```python
import torch

def _softmax(x, axis=-1):
    return torch.softmax(x, dim=axis)
def _gelu(x):
    return torch.nn.functional.gelu(x, approximate="tanh")
def _silu(x):
    return torch.nn.functional.silu(x)
def _sigmoid(x):
    return torch.sigmoid(x)
def _layernorm(x, axis=-1, eps=1e-5):
    m = x.mean(dim=axis, keepdim=True)
    v = x.var(dim=axis, keepdim=True, unbiased=False)
    return (x - m) / torch.sqrt(v + eps)
def _scatter_add(tgt, idx, src, axis=0):
    return tgt.clone().index_add_(axis, idx, src)
def _segment_sum(src, seg, n):
    out = torch.zeros((n,) + src.shape[1:], dtype=src.dtype)
    return out.index_add_(0, seg, src)
def _pad(x, pw):
    flat = tuple(v for pair in reversed(pw) for v in pair)
    return torch.nn.functional.pad(x, flat)

kernel_name = 'standalone__gqa_softmax__sampling'

def setup_inputs():

    _w = (lambda a: (lambda t: t.to(torch.bfloat16) if t.is_floating_point() else t)(torch.as_tensor(a)))
    B, Hq, Hkv, Sq, Sk, D = 8, 32, 4, 4, 8192, 128
    return {
        "q": _w((lambda *s: torch.randn(*s, dtype=torch.bfloat16) * 0.8)(B, Hq, Sq, D)),
        "k": _w((lambda *s: torch.randn(*s, dtype=torch.bfloat16) * 0.8)(B, Hkv, Sk, D)),
        "v": _w((lambda *s: torch.randn(*s, dtype=torch.bfloat16) * 0.05)(B, Hkv, Sk, D)),
    }

def reference(q, k, v):
    B, Hq, Sq, D = q.shape
    Hkv = k.shape[1]
    rep = Hq // Hkv
    k = (lambda x, n, axis: torch.repeat_interleave(x, n, dim=axis))(k, rep, axis=1)
    v = (lambda x, n, axis: torch.repeat_interleave(x, n, dim=axis))(v, rep, axis=1)
    scale = D ** -0.5
    scores = torch.einsum("bhqd,bhkd->bhqk", q, k) * scale
    p = _softmax(scores, axis=-1)
    return torch.einsum("bhqk,bhkd->bhqd", p, v)
```

```python
import sys, json, struct, math

HEADER = """; GQA decode attention, B=8 Hq=32 Hkv=4 Sq=4 Sk=8192 D=128, bf16 in / bf16 out.
"""

def f2u(x): return struct.unpack("<I", struct.pack("<f", x))[0]

class Gen:
    def __init__(self):
        self.L = []
        self.vm = []
    def A(self, s):
        for ln in s.split("\n"):
            ln = ln.strip()
            if ln: self.L.append(("" if ln.endswith(":") else "    ") + ln)
    def vmop(self, s, tag, maybe=False):
        self.A(s); self.vm.append((tag, maybe))
    def vm_n(self, tag):
        idx = max(i for i, (t, m) in enumerate(self.vm) if t == tag)
        n = sum(1 for (t, m) in self.vm[idx + 1:] if not m)
        self.vm = self.vm[idx + 1:]
        assert n <= 63
        return n
    def wait_vm(self, tag, extra=""):
        self.A(f"s_waitcnt vmcnt({self.vm_n(tag)}) {extra}")
    def text(self): return "\n".join(self.L)

def gen(R=4, flags="nt", diag=False, spin=1 << 22, chk_item=9, prefetch_code=False):
    g = Gen(); A = g.A
    RING0 = 12288
    lds = RING0 + 4 * R * 8192
    C = math.log2(math.e) / math.sqrt(128.0)
    FLAG_OFF, ML_OFF, DATA_OFF, DIAG_OFF = 0, 0x10000, 0x80000, 0x800000
    WS_BYTES = 0x900000 if diag else DATA_OFF + 0x400000
    vKsrc = [1, 2, 3, 4]; vVsrc = 5; vKrd = list(range(6, 14)); vVrd = [14, 15, 16, 17]
    vM, vL = 18, 19
    Q0, KF0, S0, VF0, T0 = 20, 52, 84, 212, 244
    O0 = 20
    nst = [0]
    def stamp():
        if diag:
            A(f"s_memrealtime s[{64+2*nst[0]}:{65+2*nst[0]}]"); nst[0] += 1
    out = [HEADER + f"; @launch grid=(256,1,1) block=(256,1,1) lds={lds}",
           '.amdgcn_target "amdgcn-amd-amdhsa--gfx950"', ".text",
           ".globl standalone__gqa_softmax__sampling_kernel", ".p2align 8",
           ".type standalone__gqa_softmax__sampling_kernel,@function",
           "standalone__gqa_softmax__sampling_kernel:"]
    stamp()
    A(f"""
    s_cmp_ge_u32 s2, 0x100
    s_cbranch_scc1 L_end
    s_load_dwordx8 s[4:11], s[0:1], 0
    s_load_dwordx4 s[12:15], s[0:1], 32
    v_lshrrev_b32 v1, 6, v0
    v_and_b32 v0, 63, v0
    v_readfirstlane_b32 s36, v1
    s_and_b32 s38, s2, 31
    s_lshr_b32 s39, s2, 5
    v_lshrrev_b32 v6, 4, v0
    v_and_b32 v7, 15, v0
    v_xor_b32 v8, v7, v6
    v_lshlrev_b32 v8, 4, v8
    v_lshl_add_u32 v1, v6, 8, v8
    v_xor_b32 v2, 64, v1
    v_xor_b32 v3, 0x80, v1
    v_xor_b32 v4, 0xc0, v1
    s_lshl_b32 s40, s38, 21
    s_lshl_b32 s41, s39, 18
    s_add_u32 s40, s40, s41
    s_lshl_b32 s41, s36, 13
    s_add_u32 s40, s40, s41
    s_sub_u32 s18, 0x40000, s41
    s_mov_b32 s19, 0x20000
    s_mul_i32 s37, s36, {R*8192}
    s_add_u32 s37, s37, {RING0}
    s_mov_b32 s44, 0x1000
    s_mov_b32 m0, s37
    s_lshl_b32 s42, s38, 2
    s_add_u32 s42, s42, s36
    s_cmp_lg_u32 s39, 0
    s_waitcnt lgkmcnt(0)
    s_mov_b32 s28, s14
    s_mov_b32 s29, s15
    s_mov_b32 s30, {WS_BYTES}
    s_mov_b32 s31, 0x20000
    s_cbranch_scc1 L_noclear
    v_and_b32 v9, 31, v0
    v_lshlrev_b32 v9, 2, v9
    v_mov_b32 v10, 0
    s_lshl_b32 s43, s42, 7
    """)
    g.vmop("buffer_store_dword v10, v9, s[28:31], s43 offen sc0 sc1", "clear", True)
    A("""
    L_noclear:
    s_add_u32 s16, s6, s40
    s_addc_u32 s17, s7, 0
    """)
    items = [("k", t) for t in range(8)] + [("v", t) for t in range(8)]
    def issue(n, first=False):
        kind, t = items[n]; slot = n % R
        srd = "s[16:19]" if kind == "k" else "s[20:23]"
        for half in range(2):
            if first and half == 0:
                so = "0"
            elif first:
                so = "s44"; A(f"s_add_u32 m0, s37, {slot*8192 + 4096}"); A("s_nop 0")
            else:
                so = "s44"
                A(f"s_add_u32 m0, s37, {slot*8192 + half*4096}")
                A(f"s_mov_b32 s44, {t*32768 + half*4096}")
            for i in range(4):
                va = vKsrc[i] if kind == "k" else vVsrc
                g.vmop(f"buffer_load_dwordx4 v{va}, {srd}, {so} offen offset:{i*1024} {flags} lds", f"it{n}")
    issue(0, first=True)
    A(f"""
    s_lshl_b32 s41, s38, 13
    s_add_u32 s24, s4, s41
    s_addc_u32 s25, s5, 0
    s_mov_b32 s26, 0x2000
    s_mov_b32 s27, 0x20000
    s_and_b32 s41, s36, 1
    s_lshl_b32 s41, s41, 7
    v_xor_b32 v9, s41, v1
    v_xor_b32 v10, s41, v2
    s_lshl_b32 s41, s36, 11
    s_mov_b32 m0, s41
    s_add_u32 s20, s8, s40
    s_addc_u32 s21, s9, 0
    s_mov_b32 s22, s18
    s_mov_b32 s23, 0x20000
    """)
    g.vmop("buffer_load_dwordx4 v9, s[24:27], s41 offen lds", "q")
    g.vmop("buffer_load_dwordx4 v10, s[24:27], s41 offen offset:1024 lds", "q")
    for n in range(1, R): issue(n)
    if prefetch_code:
        A("s_getpc_b64 s[46:47]\nv_lshlrev_b32 v9, 7, v0")
        g.vmop("global_load_dword v255, v9, s[46:47]", "code")
    A(f"""
    v_lshlrev_b32 v8, 2, v6
    v_xor_b32 v8, v7, v8
    v_lshlrev_b32 v8, 4, v8
    v_lshl_add_u32 v{vVsrc}, v6, 8, v8
    v_lshrrev_b32 v{T0}, 5, v0
    v_and_b32 v{T0+1}, 31, v0
    v_xor_b32 v{T0+2}, v{T0}, v7
    v_lshlrev_b32 v{T0+2}, 4, v{T0+2}
    v_bfe_u32 v{T0+3}, v0, 2, 2
    v_lshl_add_u32 v{T0+4}, v{T0}, 2, v{T0+3}
    v_xor_b32 v{T0+5}, s36, v{T0+3}
    v_lshlrev_b32 v{T0+5}, 6, v{T0+5}
    v_lshl_add_u32 v{T0+5}, v{T0+4}, 8, v{T0+5}
    v_and_b32 v{T0+6}, 1, v6
    v_lshl_add_u32 v{T0+5}, v{T0+6}, 5, v{T0+5}
    v_and_b32 v{T0+6}, 3, v0
    v_lshl_add_u32 v{T0+5}, v{T0+6}, 3, v{T0+5}
    v_add_u32 v{vVrd[0]}, s37, v{T0+5}
    v_xor_b32 v{vVrd[1]}, 64, v{vVrd[0]}
    v_xor_b32 v{vVrd[2]}, 0x80, v{vVrd[0]}
    v_xor_b32 v{vVrd[3]}, 0xc0, v{vVrd[0]}
    v_lshl_add_u32 v{vKrd[0]}, v{T0+1}, 8, v{T0+2}
    """)
    for j in range(1, 8): A(f"v_xor_b32 v{vKrd[j]}, {j*32}, v{vKrd[0]}")
    A(f"""
    s_mov_b32 s45, {hex(f2u(C))}
    s_mov_b32 s32, s12
    s_mov_b32 s33, s13
    s_mov_b32 s34, 0x100
    s_mov_b32 s35, 0x20000
    v_mov_b32 v{vM}, 0xff800000
    v_mov_b32 v{T0+8}, s42
    """)
    g.wait_vm("q")
    stamp()
    A("s_cmp_lg_u32 s39, 0\ns_cbranch_scc1 L_nosig")
    A(f"v_mov_b32 v{T0+9}, 1")
    g.vmop(f"buffer_store_byte v{T0+9}, v{T0+8}, s[32:35], 0 offen sc0 sc1", "sig", True)
    A("L_nosig:")
    A("s_barrier")
    for j in range(8): A(f"ds_read_b128 v[{Q0+4*j}:{Q0+4*j+3}], v{vKrd[j]}")
    for j in range(8): A(f"v_add_u32 v{vKrd[j]}, s37, v{vKrd[j]}")
    def maxtile(t):
        b = S0 + 16 * t
        for r in range(0, 16, 2): A(f"v_max3_f32 v{vM}, v{b+r}, v{b+r+1}, v{vM}")
    def ptile(t):
        b = S0 + 16 * t
        for r in range(16): A(f"v_fma_f32 v{b+r}, v{b+r}, s45, -v{vM}")
        for r in range(16): A(f"v_exp_f32 v{b+r}, v{b+r}")
        for r in range(16):
            if t == 0 and r == 0: continue
            if t == 0 and r == 1: A(f"v_add_f32 v{vL}, v{b}, v{b+1}")
            else: A(f"v_add_f32 v{vL}, v{vL}, v{b+r}")
        for k in range(8): A(f"v_cvt_pk_bf16_f32 v{b+k}, v{b+2*k}, v{b+2*k+1}")
    def refill(n):
        if n + R < 16:
            if n + R == chk_item:
                g.vmop(f"buffer_load_ubyte v{T0+10}, v{T0+8}, s[32:35], 0 offen sc0 sc1", "chk")
            issue(n + R)
    for t in range(8):
        n = t; slot = n % R
        if t > 0: g.wait_vm(f"it{n}")
        for j in range(8): A(f"ds_read_b128 v[{KF0+4*j}:{KF0+4*j+3}], v{vKrd[j]} offset:{slot*8192}")
        if t > 0:
            A("s_nop 3")
            maxtile(t - 1)
        A("s_waitcnt lgkmcnt(0)")
        refill(n)
        b = S0 + 16 * t
        for j in range(8):
            c = "0" if j == 0 else f"v[{b}:{b+15}]"
            A(f"v_mfma_f32_32x32x16_bf16 v[{b}:{b+15}], v[{KF0+4*j}:{KF0+4*j+3}], v[{Q0+4*j}:{Q0+4*j+3}], {c}")
    stamp()
    A("s_nop 11")
    maxtile(7)
    A(f"""
    v_mov_b32 v{T0}, v{vM}
    s_nop 1
    v_permlane32_swap_b32 v{T0}, v{vM}
    v_max_f32 v{vM}, v{T0}, v{vM}
    v_mul_f32 v{vM}, s45, v{vM}
    """)
    for t in range(8):
        n = 8 + t; slot = n % R
        ptile(t)
        if t == 7:
            A(f"""
            v_mov_b32 v{T0}, v{vL}
            v_lshlrev_b32 v{T0+1}, 3, v0
            s_lshl_b32 s41, s36, 9
            v_permlane32_swap_b32 v{T0}, v{vL}
            v_add_u32 v{T0+2}, s41, v{T0+1}
            v_add_f32 v{vL}, v{T0}, v{vL}
            ds_write_b64 v{T0+2}, v[{vM}:{vL}] offset:8192
            """)
            A(f"v_lshlrev_b32 v{T0+3}, 4, v0")
            A(f"v_add_u32 v{vKrd[0]}, s37, v{T0+3}")
            for j in range(1, 4):
                A(f"s_xor_b32 s41, s36, {j}")
                A(f"s_mul_i32 s43, s41, {R*8192}")
                A(f"s_add_u32 s43, s43, {RING0 + (j-1)*4096}")
                A(f"v_add_u32 v{vKrd[j]}, s43, v{T0+3}")
                A(f"s_lshl_b32 s41, s41, 9")
                A(f"v_add_u32 v{vKrd[3+j]}, s41, v{T0+1}")
            A(f"""
            v_bfe_u32 v{T0+4}, v0, 2, 3
            v_and_b32 v{T0+5}, 3, v0
            v_lshrrev_b32 v{T0+6}, 5, v0
            v_lshlrev_b32 v1, 12, v{T0+4}
            v_lshl_add_u32 v1, v{T0+6}, 6, v1
            v_lshl_add_u32 v1, v{T0+5}, 4, v1
            v_lshlrev_b32 v2, 8, v{T0+4}
            v_lshl_add_u32 v2, v{T0+5}, 3, v2
            s_lshl_b32 s46, s42, 15
            s_lshl_b32 s41, s39, 9
            s_add_u32 s47, s46, s41
            s_add_u32 s47, s47, {DATA_OFF}
            s_lshl_b32 s41, s39, 12
            s_add_u32 s46, s46, s41
            s_add_u32 s46, s46, {DATA_OFF}
            s_lshl_b32 s48, s42, 11
            s_lshl_b32 s41, s39, 5
            s_add_u32 s49, s48, s41
            s_add_u32 s49, s49, {ML_OFF}
            s_lshl_b32 s41, s39, 8
            s_add_u32 s48, s48, s41
            s_add_u32 s48, s48, {ML_OFF}
            s_lshl_b32 s50, s42, 7
            s_lshl_b32 s41, s39, 2
            s_add_u32 s51, s50, s41
            v_and_b32 v3, 7, v0
            v_lshlrev_b32 v3, 2, v3
            v_bfe_u32 v4, v0, 1, 2
            v_lshlrev_b32 v5, 8, v4
            v_lshlrev_b32 v4, 3, v4
            v_lshrrev_b32 v{T0+4}, 3, v0
            v_lshl_add_u32 v5, v{T0+4}, 3, v5
            v_and_b32 v{T0+4}, 1, v0
            v_lshl_add_u32 v5, v{T0+4}, 2, v5
            s_lshl_b32 s41, s38, 13
            s_lshl_b32 s43, s39, 10
            s_add_u32 s41, s41, s43
            s_add_u32 s24, s10, s41
            s_addc_u32 s25, s11, 0
            s_mov_b32 s26, 0x400
            s_lshl_b32 s52, s36, 6
            """)
        if n == chk_item:
            g.wait_vm(f"it{n}")
            A(f"""
            s_mov_b32 s43, {spin}
            L_chk:
            v_readfirstlane_b32 s41, v{T0+10}
            s_cmp_lg_u32 s41, 0
            s_cbranch_scc1 L_chk_ok
            buffer_load_ubyte v{T0+10}, v{T0+8}, s[32:35], 0 offen sc0 sc1
            s_sub_u32 s43, s43, 1
            s_cmp_lg_u32 s43, 0
            s_waitcnt vmcnt(0)
            s_cbranch_scc1 L_chk
            L_chk_ok:
            """)
        else:
            g.wait_vm(f"it{n}")
        if t == 7: stamp()
        order = [(ks, j) for j in (1, 2, 3, 0) for ks in range(2)]
        for ks, j in order:
            r = VF0 + (ks * 4 + j) * 4
            for s in range(2):
                A(f"ds_read_b64_tr_b16 v[{r+2*s}:{r+2*s+1}], v{vVrd[j]} offset:{slot*8192 + ks*4096 + s*2048}")
        if n + R < 16:
            A("s_waitcnt lgkmcnt(0)")
            refill(n)
        b = S0 + 16 * t
        for idx, (ks, j) in enumerate(order):
            r = VF0 + (ks * 4 + j) * 4; o = O0 + 16 * j
            c = "0" if (t == 0 and ks == 0) else f"v[{o}:{o+15}]"
            if n + R >= 16: A(f"s_waitcnt lgkmcnt({14 - 2*idx})")
            A(f"v_mfma_f32_32x32x16_bf16 v[{o}:{o+15}], v[{r}:{r+3}], v[{b+4*ks}:{b+4*ks+3}], {c}")
    A("s_nop 5")
    for j in range(1, 4):
        for q in range(4):
            o = O0 + 16 * j + 4 * q
            A(f"ds_write_b128 v{vKrd[0]}, v[{o}:{o+3}] offset:{(j-1)*4096 + q*1024}")
    A("s_waitcnt lgkmcnt(0)\ns_barrier")
    X0 = S0
    ML = S0 + 48
    F = S0 + 56
    for j in range(1, 4): A(f"ds_read_b64 v[{ML+2*(j-1)}:{ML+2*(j-1)+1}], v{vKrd[3+j]} offset:8192")
    for j in range(1, 4):
        for q in range(4):
            x = X0 + 16 * (j - 1) + 4 * q
            A(f"ds_read_b128 v[{x}:{x+3}], v{vKrd[j]} offset:{q*1024}")
    A(f"""
    s_waitcnt lgkmcnt(12)
    v_max3_f32 v{F+4}, v{ML}, v{ML+2}, v{ML+4}
    v_max_f32 v{F+4}, v{F+4}, v{vM}
    v_sub_f32 v{F}, v{vM}, v{F+4}
    v_sub_f32 v{F+1}, v{ML}, v{F+4}
    v_sub_f32 v{F+2}, v{ML+2}, v{F+4}
    v_sub_f32 v{F+3}, v{ML+4}, v{F+4}
    v_exp_f32 v{F}, v{F}
    v_exp_f32 v{F+1}, v{F+1}
    v_exp_f32 v{F+2}, v{F+2}
    v_exp_f32 v{F+3}, v{F+3}
    v_mul_f32 v{F+5}, v{F}, v{vL}
    v_fmac_f32 v{F+5}, v{F+1}, v{ML+1}
    v_fmac_f32 v{F+5}, v{F+2}, v{ML+3}
    v_fmac_f32 v{F+5}, v{F+3}, v{ML+5}
    """)
    g.vmop(f"buffer_store_dwordx2 v[{F+4}:{F+5}], v2, s[28:31], s49 offen sc0 sc1", "st")
    for r in range(16): A(f"v_mul_f32 v{O0+r}, v{F}, v{O0+r}")
    for j in range(1, 3):
        A(f"s_waitcnt lgkmcnt({12 - 4*j})")
        for r in range(16): A(f"v_fmac_f32 v{O0+r}, v{F+j}, v{X0+16*(j-1)+r}")
    for q in range(4):
        A(f"s_waitcnt lgkmcnt({3 - q})")
        for r in range(4*q, 4*q + 4): A(f"v_fmac_f32 v{O0+r}, v{F+3}, v{X0+32+r}")
        g.vmop(f"buffer_store_dwordx4 v[{O0+4*q}:{O0+4*q+3}], v1, s[28:31], s47 offen offset:{q*128} sc0 sc1", "st")
    stamp()
    A(f"v_mov_b32 v{T0}, 1\nv_mov_b32 v{T0+2}, 0")
    g.wait_vm("st")
    stamp()
    A(f"""
    buffer_store_dword v{T0}, v{T0+2}, s[28:31], s51 offen sc0 sc1
    s_mov_b32 s43, {spin}
    L_poll:
    buffer_load_dword v{T0+3}, v3, s[28:31], s50 offen sc0 sc1
    s_sub_u32 s43, s43, 1
    s_cmp_eq_u32 s43, 0
    s_cbranch_scc1 L_poll_ok
    s_waitcnt vmcnt(0)
    v_cmp_ne_u32 vcc, 1, v{T0+3}
    s_cbranch_vccnz L_poll
    L_poll_ok:
    """)
    stamp()
    D0 = S0; E0 = S0 + 16; W0 = S0 + 32
    for i in range(8): A(f"buffer_load_dwordx2 v[{E0+2*i}:{E0+2*i+1}], v4, s[28:31], s48 offen offset:{i*32} sc0 sc1")
    for i in range(8): A(f"buffer_load_dwordx2 v[{D0+2*i}:{D0+2*i+1}], v{T0+1}, s[28:31], s46 offen offset:{i*512} sc0 sc1")
    A(f"""
    s_waitcnt vmcnt(8)
    v_max3_f32 v{W0+8}, v{E0}, v{E0+2}, v{E0+4}
    v_max3_f32 v{W0+9}, v{E0+6}, v{E0+8}, v{E0+10}
    v_max3_f32 v{W0+8}, v{E0+12}, v{E0+14}, v{W0+8}
    v_max_f32 v{W0+8}, v{W0+8}, v{W0+9}
    """)
    for i in range(8): A(f"v_sub_f32 v{W0+i}, v{E0+2*i}, v{W0+8}")
    for i in range(8): A(f"v_exp_f32 v{W0+i}, v{W0+i}")
    A(f"v_mul_f32 v{W0+9}, v{W0}, v{E0+1}")
    for i in range(1, 8): A(f"v_fmac_f32 v{W0+9}, v{W0+i}, v{E0+2*i+1}")
    A(f"v_rcp_f32 v{W0+9}, v{W0+9}")
    A("s_waitcnt vmcnt(7)")
    A(f"v_mul_f32 v{W0+10}, v{W0}, v{D0}\nv_mul_f32 v{W0+11}, v{W0}, v{D0+1}")
    for i in range(1, 8):
        A(f"s_waitcnt vmcnt({7-i})")
        A(f"v_fmac_f32 v{W0+10}, v{W0+i}, v{D0+2*i}\nv_fmac_f32 v{W0+11}, v{W0+i}, v{D0+2*i+1}")
    stamp()
    A(f"""
    v_mul_f32 v{W0+10}, v{W0+10}, v{W0+9}
    v_mul_f32 v{W0+11}, v{W0+11}, v{W0+9}
    v_cvt_pk_bf16_f32 v{W0+10}, v{W0+10}, v{W0+11}
    buffer_store_dword v{W0+10}, v5, s[24:27], s52 offen
    """)
    if diag:
        A("s_waitcnt vmcnt(0)")
        stamp()
        A("s_getreg_b32 s41, hwreg(HW_REG_XCC_ID)")
        A(f"s_lshl_b32 s43, s2, 2\ns_add_u32 s43, s43, s36\ns_lshl_b32 s43, s43, 6\ns_add_u32 s43, s43, {DIAG_OFF}")
        A("s_waitcnt lgkmcnt(0)\nv_mov_b32 v1, 0")
        for k in range(nst[0]):
            A(f"v_mov_b32 v2, s{64+2*k}\nbuffer_store_dword v2, v1, s[28:31], s43 offen offset:{4*k}")
        A(f"v_mov_b32 v2, s41\nbuffer_store_dword v2, v1, s[28:31], s43 offen offset:60")
    A("L_end:\ns_endpgm")
    out.append(g.text())
    out.append(f""".section .rodata,"a"
.p2align 6
.amdhsa_kernel standalone__gqa_softmax__sampling_kernel
  .amdhsa_next_free_vgpr 256
  .amdhsa_next_free_sgpr 96
  .amdhsa_accum_offset 256
  .amdhsa_group_segment_fixed_size 0
  .amdhsa_kernarg_size 48
  .amdhsa_user_sgpr_count 2
  .amdhsa_user_sgpr_kernarg_segment_ptr 1
  .amdhsa_system_sgpr_workgroup_id_x 1
  .amdhsa_float_denorm_mode_32 3
.end_amdhsa_kernel
""")
    return "\n".join(out)

if __name__ == "__main__":
    cfg = json.loads(sys.argv[1]) if len(sys.argv) > 1 else {}
    print(gen(**cfg))
```

```python
import sys, json, struct, math

HEADER = """; GQA decode attention, B=8 Hq=32 Hkv=4 Sq=4 Sk=8192 D=128, bf16 in / bf16 out.
"""

def f2u(x): return struct.unpack("<I", struct.pack("<f", x))[0]

class Gen:
    def __init__(self):
        self.L = []
        self.vm = []
    def A(self, s):
        for ln in s.split("\n"):
            ln = ln.strip()
            if ln: self.L.append(("" if ln.endswith(":") else "    ") + ln)
    def vmop(self, s, tag, maybe=False):
        self.A(s); self.vm.append((tag, maybe))
    def vm_n(self, tag):
        idx = max(i for i, (t, m) in enumerate(self.vm) if t == tag)
        n = sum(1 for (t, m) in self.vm[idx + 1:] if not m)
        self.vm = self.vm[idx + 1:]
        assert n <= 63
        return n
    def wait_vm(self, tag, extra=""):
        self.A(f"s_waitcnt vmcnt({self.vm_n(tag)}) {extra}")
    def text(self): return "\n".join(self.L)

def gen(R=4, flags="nt", diag=False, spin=1 << 22, chk_item=9, prefetch_code=False, hdiag=0):
    g = Gen(); A = g.A
    RING0 = 12288
    lds = RING0 + 4 * R * 8192
    C = math.log2(math.e) / math.sqrt(128.0)
    FLAG_OFF, ML_OFF, DATA_OFF, DIAG_OFF = 0, 0x10000, 0x80000, 0x800000
    WS_BYTES = 0x900000 if diag else DATA_OFF + 0x400000
    vKsrc = [1, 2, 3, 4]; vVsrc = 5; vKrd = list(range(6, 14)); vVrd = [14, 15, 16, 17]
    vM, vL = 18, 19
    Q0, KF0, S0, VF0, T0 = 20, 52, 84, 212, 244
    O0 = 20
    nst = [0]
    def stamp():
        if diag or hdiag:
            A(f"s_memrealtime s[{64+2*nst[0]}:{65+2*nst[0]}]"); nst[0] += 1
    out = [HEADER + f"; @launch grid=(256,1,1) block=(256,1,1) lds={lds}",
           '.amdgcn_target "amdgcn-amd-amdhsa--gfx950"', ".text",
           ".globl standalone__gqa_softmax__sampling_kernel", ".p2align 8",
           ".type standalone__gqa_softmax__sampling_kernel,@function",
           "standalone__gqa_softmax__sampling_kernel:"]
    stamp()
    A(f"""
    s_cmp_ge_u32 s2, 0x100
    s_cbranch_scc1 L_end
    s_load_dwordx8 s[4:11], s[0:1], 0
    s_load_dwordx4 s[12:15], s[0:1], 32
    v_lshrrev_b32 v1, 6, v0
    v_and_b32 v0, 63, v0
    v_readfirstlane_b32 s36, v1
    s_and_b32 s38, s2, 31
    s_lshr_b32 s39, s2, 5
    v_lshrrev_b32 v6, 4, v0
    v_and_b32 v7, 15, v0
    v_xor_b32 v8, v7, v6
    v_lshlrev_b32 v8, 4, v8
    v_lshl_add_u32 v1, v6, 8, v8
    v_xor_b32 v2, 64, v1
    v_xor_b32 v3, 0x80, v1
    v_xor_b32 v4, 0xc0, v1
    s_lshl_b32 s40, s38, 21
    s_lshl_b32 s41, s39, 18
    s_add_u32 s40, s40, s41
    s_lshl_b32 s41, s36, 13
    s_add_u32 s40, s40, s41
    s_sub_u32 s18, 0x40000, s41
    s_mov_b32 s19, 0x20000
    s_mul_i32 s37, s36, {R*8192}
    s_add_u32 s37, s37, {RING0}
    s_mov_b32 s44, 0x1000
    s_mov_b32 m0, s37
    s_lshl_b32 s42, s38, 2
    s_add_u32 s42, s42, s36
    s_cmp_lg_u32 s39, 0
    s_waitcnt lgkmcnt(0)
    s_mov_b32 s28, s14
    s_mov_b32 s29, s15
    s_mov_b32 s30, {WS_BYTES}
    s_mov_b32 s31, 0x20000
    s_cbranch_scc1 L_noclear
    v_and_b32 v9, 31, v0
    v_lshlrev_b32 v9, 2, v9
    v_mov_b32 v10, 0
    s_lshl_b32 s43, s42, 7
    """)
    g.vmop("buffer_store_dword v10, v9, s[28:31], s43 offen sc0 sc1", "clear", True)
    A("""
    L_noclear:
    s_add_u32 s16, s6, s40
    s_addc_u32 s17, s7, 0
    """)
    items = [("k", t) for t in range(8)] + [("v", t) for t in range(8)]
    def issue(n, first=False):
        kind, t = items[n]; slot = n % R
        srd = "s[16:19]" if kind == "k" else "s[20:23]"
        for half in range(2):
            if first and half == 0:
                so = "0"
            elif first:
                so = "s44"; A(f"s_add_u32 m0, s37, {slot*8192 + 4096}"); A("s_nop 0")
            else:
                so = "s44"
                A(f"s_add_u32 m0, s37, {slot*8192 + half*4096}")
                A(f"s_mov_b32 s44, {t*32768 + half*4096}")
            for i in range(4):
                va = vKsrc[i] if kind == "k" else vVsrc
                g.vmop(f"buffer_load_dwordx4 v{va}, {srd}, {so} offen offset:{i*1024} {flags} lds", f"it{n}")
    issue(0, first=True)
    A(f"""
    s_lshl_b32 s41, s38, 13
    s_add_u32 s24, s4, s41
    s_addc_u32 s25, s5, 0
    s_mov_b32 s26, 0x2000
    s_mov_b32 s27, 0x20000
    s_and_b32 s41, s36, 1
    s_lshl_b32 s41, s41, 7
    v_xor_b32 v9, s41, v1
    v_xor_b32 v10, s41, v2
    s_lshl_b32 s41, s36, 11
    s_mov_b32 m0, s41
    s_add_u32 s20, s8, s40
    s_addc_u32 s21, s9, 0
    s_mov_b32 s22, s18
    s_mov_b32 s23, 0x20000
    """)
    g.vmop("buffer_load_dwordx4 v9, s[24:27], s41 offen lds", "q")
    g.vmop("buffer_load_dwordx4 v10, s[24:27], s41 offen offset:1024 lds", "q")
    for n in range(1, R): issue(n)
    if prefetch_code:
        A("s_getpc_b64 s[46:47]\nv_lshlrev_b32 v9, 7, v0")
        g.vmop("global_load_dword v255, v9, s[46:47]", "code")
    A(f"""
    v_lshlrev_b32 v8, 2, v6
    v_xor_b32 v8, v7, v8
    v_lshlrev_b32 v8, 4, v8
    v_lshl_add_u32 v{vVsrc}, v6, 8, v8
    v_lshrrev_b32 v{T0}, 5, v0
    v_and_b32 v{T0+1}, 31, v0
    v_xor_b32 v{T0+2}, v{T0}, v7
    v_lshlrev_b32 v{T0+2}, 4, v{T0+2}
    v_bfe_u32 v{T0+3}, v0, 2, 2
    v_lshl_add_u32 v{T0+4}, v{T0}, 2, v{T0+3}
    v_xor_b32 v{T0+5}, s36, v{T0+3}
    v_lshlrev_b32 v{T0+5}, 6, v{T0+5}
    v_lshl_add_u32 v{T0+5}, v{T0+4}, 8, v{T0+5}
    v_and_b32 v{T0+6}, 1, v6
    v_lshl_add_u32 v{T0+5}, v{T0+6}, 5, v{T0+5}
    v_and_b32 v{T0+6}, 3, v0
    v_lshl_add_u32 v{T0+5}, v{T0+6}, 3, v{T0+5}
    v_add_u32 v{vVrd[0]}, s37, v{T0+5}
    v_xor_b32 v{vVrd[1]}, 64, v{vVrd[0]}
    v_xor_b32 v{vVrd[2]}, 0x80, v{vVrd[0]}
    v_xor_b32 v{vVrd[3]}, 0xc0, v{vVrd[0]}
    v_lshl_add_u32 v{vKrd[0]}, v{T0+1}, 8, v{T0+2}
    """)
    for j in range(1, 8): A(f"v_xor_b32 v{vKrd[j]}, {j*32}, v{vKrd[0]}")
    A(f"""
    s_mov_b32 s45, {hex(f2u(C))}
    s_mov_b32 s32, s12
    s_mov_b32 s33, s13
    s_mov_b32 s34, 0x100
    s_mov_b32 s35, 0x20000
    v_mov_b32 v{vM}, 0xff800000
    v_mov_b32 v{T0+8}, s42
    {'v_add_u32 v%d, 0x80, v%d' % (T0+8, T0+8) if hdiag else ''}
    """)
    g.wait_vm("q")
    stamp()
    A("s_cmp_lg_u32 s39, 0\ns_cbranch_scc1 L_nosig")
    A(f"v_mov_b32 v{T0+9}, 1")
    g.vmop(f"buffer_store_byte v{T0+9}, v{T0+8}, s[32:35], 0 offen sc0 sc1", "sig", True)
    A("L_nosig:")
    A("s_barrier")
    for j in range(8): A(f"ds_read_b128 v[{Q0+4*j}:{Q0+4*j+3}], v{vKrd[j]}")
    for j in range(8): A(f"v_add_u32 v{vKrd[j]}, s37, v{vKrd[j]}")
    def maxtile(t):
        b = S0 + 16 * t
        for r in range(0, 16, 2): A(f"v_max3_f32 v{vM}, v{b+r}, v{b+r+1}, v{vM}")
    def ptile(t):
        b = S0 + 16 * t
        for r in range(16): A(f"v_fma_f32 v{b+r}, v{b+r}, s45, -v{vM}")
        for r in range(16): A(f"v_exp_f32 v{b+r}, v{b+r}")
        for r in range(16):
            if t == 0 and r == 0: continue
            if t == 0 and r == 1: A(f"v_add_f32 v{vL}, v{b}, v{b+1}")
            else: A(f"v_add_f32 v{vL}, v{vL}, v{b+r}")
        for k in range(8): A(f"v_cvt_pk_bf16_f32 v{b+k}, v{b+2*k}, v{b+2*k+1}")
    def refill(n):
        if n + R < 16:
            if n + R == chk_item:
                g.vmop(f"buffer_load_ubyte v{T0+10}, v{T0+8}, s[32:35], 0 offen sc0 sc1", "chk")
            issue(n + R)
    for t in range(8):
        n = t; slot = n % R
        if t > 0: g.wait_vm(f"it{n}")
        for j in range(8): A(f"ds_read_b128 v[{KF0+4*j}:{KF0+4*j+3}], v{vKrd[j]} offset:{slot*8192}")
        if t > 0:
            A("s_nop 3")
            maxtile(t - 1)
        A("s_waitcnt lgkmcnt(0)")
        refill(n)
        b = S0 + 16 * t
        for j in range(8):
            c = "0" if j == 0 else f"v[{b}:{b+15}]"
            A(f"v_mfma_f32_32x32x16_bf16 v[{b}:{b+15}], v[{KF0+4*j}:{KF0+4*j+3}], v[{Q0+4*j}:{Q0+4*j+3}], {c}")
    stamp()
    A("s_nop 11")
    maxtile(7)
    A(f"""
    v_mov_b32 v{T0}, v{vM}
    s_nop 1
    v_permlane32_swap_b32 v{T0}, v{vM}
    v_max_f32 v{vM}, v{T0}, v{vM}
    v_mul_f32 v{vM}, s45, v{vM}
    """)
    for t in range(8):
        n = 8 + t; slot = n % R
        ptile(t)
        if t == 7:
            A(f"""
            v_mov_b32 v{T0}, v{vL}
            v_lshlrev_b32 v{T0+1}, 3, v0
            s_lshl_b32 s41, s36, 9
            v_permlane32_swap_b32 v{T0}, v{vL}
            v_add_u32 v{T0+2}, s41, v{T0+1}
            v_add_f32 v{vL}, v{T0}, v{vL}
            ds_write_b64 v{T0+2}, v[{vM}:{vL}] offset:8192
            """)
            A(f"v_lshlrev_b32 v{T0+3}, 4, v0")
            A(f"v_add_u32 v{vKrd[0]}, s37, v{T0+3}")
            for j in range(1, 4):
                A(f"s_xor_b32 s41, s36, {j}")
                A(f"s_mul_i32 s43, s41, {R*8192}")
                A(f"s_add_u32 s43, s43, {RING0 + (j-1)*4096}")
                A(f"v_add_u32 v{vKrd[j]}, s43, v{T0+3}")
                A(f"s_lshl_b32 s41, s41, 9")
                A(f"v_add_u32 v{vKrd[3+j]}, s41, v{T0+1}")
            A(f"""
            v_bfe_u32 v{T0+4}, v0, 2, 3
            v_and_b32 v{T0+5}, 3, v0
            v_lshrrev_b32 v{T0+6}, 5, v0
            v_lshlrev_b32 v1, 12, v{T0+4}
            v_lshl_add_u32 v1, v{T0+6}, 6, v1
            v_lshl_add_u32 v1, v{T0+5}, 4, v1
            v_lshlrev_b32 v2, 8, v{T0+4}
            v_lshl_add_u32 v2, v{T0+5}, 3, v2
            s_lshl_b32 s46, s42, 15
            s_lshl_b32 s41, s39, 9
            s_add_u32 s47, s46, s41
            s_add_u32 s47, s47, {DATA_OFF}
            s_lshl_b32 s41, s39, 12
            s_add_u32 s46, s46, s41
            s_add_u32 s46, s46, {DATA_OFF}
            s_lshl_b32 s48, s42, 11
            s_lshl_b32 s41, s39, 5
            s_add_u32 s49, s48, s41
            s_add_u32 s49, s49, {ML_OFF}
            s_lshl_b32 s41, s39, 8
            s_add_u32 s48, s48, s41
            s_add_u32 s48, s48, {ML_OFF}
            s_lshl_b32 s50, s42, 7
            s_lshl_b32 s41, s39, 2
            s_add_u32 s51, s50, s41
            v_and_b32 v3, 7, v0
            v_lshlrev_b32 v3, 2, v3
            v_bfe_u32 v4, v0, 1, 2
            v_lshlrev_b32 v5, 8, v4
            v_lshlrev_b32 v4, 3, v4
            v_lshrrev_b32 v{T0+4}, 3, v0
            v_lshl_add_u32 v5, v{T0+4}, 3, v5
            v_and_b32 v{T0+4}, 1, v0
            v_lshl_add_u32 v5, v{T0+4}, 2, v5
            s_lshl_b32 s41, s38, 13
            s_lshl_b32 s43, s39, 10
            s_add_u32 s41, s41, s43
            s_add_u32 s24, s10, s41
            s_addc_u32 s25, s11, 0
            s_mov_b32 s26, 0x400
            s_lshl_b32 s52, s36, 6
            """)
        if n == chk_item:
            g.wait_vm(f"it{n}")
            A(f"""
            s_mov_b32 s43, {spin}
            L_chk:
            v_readfirstlane_b32 s41, v{T0+10}
            s_cmp_lg_u32 s41, 0
            s_cbranch_scc1 L_chk_ok
            buffer_load_ubyte v{T0+10}, v{T0+8}, s[32:35], 0 offen sc0 sc1
            s_sub_u32 s43, s43, 1
            s_cmp_lg_u32 s43, 0
            s_waitcnt vmcnt(0)
            s_cbranch_scc1 L_chk
            L_chk_ok:
            """)
        else:
            g.wait_vm(f"it{n}")
        if t == 7: stamp()
        order = [(ks, j) for j in (1, 2, 3, 0) for ks in range(2)]
        for ks, j in order:
            r = VF0 + (ks * 4 + j) * 4
            for s in range(2):
                A(f"ds_read_b64_tr_b16 v[{r+2*s}:{r+2*s+1}], v{vVrd[j]} offset:{slot*8192 + ks*4096 + s*2048}")
        if n + R < 16:
            A("s_waitcnt lgkmcnt(0)")
            refill(n)
        b = S0 + 16 * t
        for idx, (ks, j) in enumerate(order):
            r = VF0 + (ks * 4 + j) * 4; o = O0 + 16 * j
            c = "0" if (t == 0 and ks == 0) else f"v[{o}:{o+15}]"
            if n + R >= 16: A(f"s_waitcnt lgkmcnt({14 - 2*idx})")
            A(f"v_mfma_f32_32x32x16_bf16 v[{o}:{o+15}], v[{r}:{r+3}], v[{b+4*ks}:{b+4*ks+3}], {c}")
    A("s_nop 5")
    for j in range(1, 4):
        for q in range(4):
            o = O0 + 16 * j + 4 * q
            A(f"ds_write_b128 v{vKrd[0]}, v[{o}:{o+3}] offset:{(j-1)*4096 + q*1024}")
    A("s_waitcnt lgkmcnt(0)\ns_barrier")
    X0 = S0
    ML = S0 + 48
    F = S0 + 56
    for j in range(1, 4): A(f"ds_read_b64 v[{ML+2*(j-1)}:{ML+2*(j-1)+1}], v{vKrd[3+j]} offset:8192")
    for j in range(1, 4):
        for q in range(4):
            x = X0 + 16 * (j - 1) + 4 * q
            A(f"ds_read_b128 v[{x}:{x+3}], v{vKrd[j]} offset:{q*1024}")
    A(f"""
    s_waitcnt lgkmcnt(12)
    v_max3_f32 v{F+4}, v{ML}, v{ML+2}, v{ML+4}
    v_max_f32 v{F+4}, v{F+4}, v{vM}
    v_sub_f32 v{F}, v{vM}, v{F+4}
    v_sub_f32 v{F+1}, v{ML}, v{F+4}
    v_sub_f32 v{F+2}, v{ML+2}, v{F+4}
    v_sub_f32 v{F+3}, v{ML+4}, v{F+4}
    v_exp_f32 v{F}, v{F}
    v_exp_f32 v{F+1}, v{F+1}
    v_exp_f32 v{F+2}, v{F+2}
    v_exp_f32 v{F+3}, v{F+3}
    v_mul_f32 v{F+5}, v{F}, v{vL}
    v_fmac_f32 v{F+5}, v{F+1}, v{ML+1}
    v_fmac_f32 v{F+5}, v{F+2}, v{ML+3}
    v_fmac_f32 v{F+5}, v{F+3}, v{ML+5}
    """)
    g.vmop(f"buffer_store_dwordx2 v[{F+4}:{F+5}], v2, s[28:31], s49 offen sc0 sc1", "st")
    for r in range(16): A(f"v_mul_f32 v{O0+r}, v{F}, v{O0+r}")
    for j in range(1, 3):
        A(f"s_waitcnt lgkmcnt({12 - 4*j})")
        for r in range(16): A(f"v_fmac_f32 v{O0+r}, v{F+j}, v{X0+16*(j-1)+r}")
    for q in range(4):
        A(f"s_waitcnt lgkmcnt({3 - q})")
        for r in range(4*q, 4*q + 4): A(f"v_fmac_f32 v{O0+r}, v{F+3}, v{X0+32+r}")
        g.vmop(f"buffer_store_dwordx4 v[{O0+4*q}:{O0+4*q+3}], v1, s[28:31], s47 offen offset:{q*128} sc0 sc1", "st")
    stamp()
    A(f"v_mov_b32 v{T0}, 1\nv_mov_b32 v{T0+2}, 0")
    g.wait_vm("st")
    stamp()
    A(f"""
    buffer_store_dword v{T0}, v{T0+2}, s[28:31], s51 offen sc0 sc1
    s_mov_b32 s43, {spin}
    L_poll:
    buffer_load_dword v{T0+3}, v3, s[28:31], s50 offen sc0 sc1
    s_sub_u32 s43, s43, 1
    s_cmp_eq_u32 s43, 0
    s_cbranch_scc1 L_poll_ok
    s_waitcnt vmcnt(0)
    v_cmp_ne_u32 vcc, 1, v{T0+3}
    s_cbranch_vccnz L_poll
    L_poll_ok:
    """)
    stamp()
    D0 = S0; E0 = S0 + 16; W0 = S0 + 32
    for i in range(8): A(f"buffer_load_dwordx2 v[{E0+2*i}:{E0+2*i+1}], v4, s[28:31], s48 offen offset:{i*32} sc0 sc1")
    for i in range(8): A(f"buffer_load_dwordx2 v[{D0+2*i}:{D0+2*i+1}], v{T0+1}, s[28:31], s46 offen offset:{i*512} sc0 sc1")
    A(f"""
    s_waitcnt vmcnt(8)
    v_max3_f32 v{W0+8}, v{E0}, v{E0+2}, v{E0+4}
    v_max3_f32 v{W0+9}, v{E0+6}, v{E0+8}, v{E0+10}
    v_max3_f32 v{W0+8}, v{E0+12}, v{E0+14}, v{W0+8}
    v_max_f32 v{W0+8}, v{W0+8}, v{W0+9}
    """)
    for i in range(8): A(f"v_sub_f32 v{W0+i}, v{E0+2*i}, v{W0+8}")
    for i in range(8): A(f"v_exp_f32 v{W0+i}, v{W0+i}")
    A(f"v_mul_f32 v{W0+9}, v{W0}, v{E0+1}")
    for i in range(1, 8): A(f"v_fmac_f32 v{W0+9}, v{W0+i}, v{E0+2*i+1}")
    A(f"v_rcp_f32 v{W0+9}, v{W0+9}")
    A("s_waitcnt vmcnt(7)")
    A(f"v_mul_f32 v{W0+10}, v{W0}, v{D0}\nv_mul_f32 v{W0+11}, v{W0}, v{D0+1}")
    for i in range(1, 8):
        A(f"s_waitcnt vmcnt({7-i})")
        A(f"v_fmac_f32 v{W0+10}, v{W0+i}, v{D0+2*i}\nv_fmac_f32 v{W0+11}, v{W0+i}, v{D0+2*i+1}")
    stamp()
    A(f"""
    v_mul_f32 v{W0+10}, v{W0+10}, v{W0+9}
    v_mul_f32 v{W0+11}, v{W0+11}, v{W0+9}
    v_cvt_pk_bf16_f32 v{W0+10}, v{W0+10}, v{W0+11}
    buffer_store_dword v{W0+10}, v5, s[24:27], s52 offen
    """)
    if diag:
        A("s_waitcnt vmcnt(0)")
        stamp()
        A("s_getreg_b32 s41, hwreg(HW_REG_XCC_ID)")
        A(f"s_lshl_b32 s43, s2, 2\ns_add_u32 s43, s43, s36\ns_lshl_b32 s43, s43, 6\ns_add_u32 s43, s43, {DIAG_OFF}")
        A("s_waitcnt lgkmcnt(0)\nv_mov_b32 v1, 0")
        for k in range(nst[0]):
            A(f"v_mov_b32 v2, s{64+2*k}\nbuffer_store_dword v2, v1, s[28:31], s43 offen offset:{4*k}")
        A(f"v_mov_b32 v2, s41\nbuffer_store_dword v2, v1, s[28:31], s43 offen offset:60")
    if hdiag:
        A("s_waitcnt vmcnt(0)")
        stamp()
        A("s_waitcnt lgkmcnt(0)\nv_mov_b32 v1, 0\ns_mov_b64 exec, 1")
        for k in range(1, nst[0]):
            A(f"s_sub_u32 s41, s{64+2*k}, s64\nv_mov_b32 v2, s41\nbuffer_atomic_umax v2, v1, s[32:35], 0 offen offset:{4*k}")
    A("L_end:\ns_endpgm")
    out.append(g.text())
    out.append(f""".section .rodata,"a"
.p2align 6
.amdhsa_kernel standalone__gqa_softmax__sampling_kernel
  .amdhsa_next_free_vgpr 256
  .amdhsa_next_free_sgpr 96
  .amdhsa_accum_offset 256
  .amdhsa_group_segment_fixed_size 0
  .amdhsa_kernarg_size 48
  .amdhsa_user_sgpr_count 2
  .amdhsa_user_sgpr_kernarg_segment_ptr 1
  .amdhsa_system_sgpr_workgroup_id_x 1
  .amdhsa_float_denorm_mode_32 3
.end_amdhsa_kernel
""")
    return "\n".join(out)

if __name__ == "__main__":
    cfg = json.loads(sys.argv[1]) if len(sys.argv) > 1 else {}
    print(gen(**cfg))
```

```python
import sys, json, struct, math

HEADER = """; GQA decode attention, B=8 Hq=32 Hkv=4 Sq=4 Sk=8192 D=128, bf16 in / bf16 out.
"""

def f2u(x): return struct.unpack("<I", struct.pack("<f", x))[0]

class Gen:
    def __init__(self):
        self.L = []
        self.skip = ()
        self.vm = []
    def A(self, s):
        for ln in s.split("\n"):
            ln = ln.strip()
            if ln: self.L.append(("" if ln.endswith(":") else "    ") + ln)
    def vmop(self, s, tag, maybe=False):
        if tag in self.skip: return
        self.A(s); self.vm.append((tag, maybe))
    def vm_n(self, tag):
        idx = max(i for i, (t, m) in enumerate(self.vm) if t == tag)
        n = sum(1 for (t, m) in self.vm[idx + 1:] if not m)
        self.vm = self.vm[idx + 1:]
        assert n <= 63
        return n
    def wait_vm(self, tag, extra=""):
        self.A(f"s_waitcnt vmcnt({self.vm_n(tag)}) {extra}")
    def text(self): return "\n".join(self.L)

def gen(R=4, flags="nt", diag=False, spin=1 << 22, chk_item=12, sc='sc1', psleep=0, osc='', fm='shared', psc=None, bigclear=-1, asc='', early=7, dsc=None, pretouch=-1, prefetch_code=False, hdiag=0, abl=''):
    g = Gen()
    if "c" in abl: g.skip = ("clear", "sig", "chk"); chk_item = 99
    def A(txt):
        keep = []
        for ln in txt.split("\n"):
            t = ln.strip()
            if "m" in abl and t.startswith("v_mfma"): continue
            if "v" in abl and t.split(" ")[0] in ("v_max3_f32", "v_fma_f32", "v_exp_f32", "v_add_f32", "v_cvt_pk_bf16_f32"): continue
            if "d" in abl and t.startswith("ds_read"): continue
            if "b" in abl and t.startswith("s_barrier"): continue
            if "c" in abl and "sc0 sc1" in t and (t.startswith("buffer_store_byte") or "s43" in t): t = ln = "s_nop 0"
            if "t" in abl and t == "s_nop 5": keep.append("s_branch L_diag")
            keep.append(ln)
        g.A("\n".join(keep))
    RING0 = 12288
    lds = RING0 + 4 * R * 8192
    C = math.log2(math.e) / math.sqrt(128.0)
    FLAG_OFF, ML_OFF, DATA_OFF, DIAG_OFF = 0, 0x10000, 0x80000, 0x800000
    FL2 = 0x500000
    if psc is None: psc = sc
    if dsc is None: dsc = psc
    WS_BYTES = 0x900000 if diag else DATA_OFF + 0x400000
    vKsrc = [1, 2, 3, 4]; vVsrc = 5; vKrd = list(range(6, 14)); vVrd = [14, 15, 16, 17]
    vM, vL = 18, 19
    Q0, KF0, S0, VF0, T0 = 20, 52, 84, 212, 244
    O0 = 20
    nst = [0]
    def stamp():
        if diag or hdiag:
            A(f"s_memrealtime s[{64+2*nst[0]}:{65+2*nst[0]}]"); nst[0] += 1
    out = [HEADER + f"; @launch grid=(256,1,1) block=(256,1,1) lds={lds}",
           '.amdgcn_target "amdgcn-amd-amdhsa--gfx950"', ".text",
           ".globl standalone__gqa_softmax__sampling_kernel", ".p2align 8",
           ".type standalone__gqa_softmax__sampling_kernel,@function",
           "standalone__gqa_softmax__sampling_kernel:"]
    stamp()
    A(f"""
    s_cmp_ge_u32 s2, 0x100
    s_cbranch_scc1 L_end
    s_load_dwordx8 s[4:11], s[0:1], 0
    s_load_dwordx4 s[12:15], s[0:1], 32
    v_lshrrev_b32 v1, 6, v0
    v_and_b32 v0, 63, v0
    v_readfirstlane_b32 s36, v1
    s_and_b32 s38, s2, 31
    s_lshr_b32 s39, s2, 5
    v_lshrrev_b32 v6, 4, v0
    v_and_b32 v7, 15, v0
    v_xor_b32 v8, v7, v6
    v_lshlrev_b32 v8, 4, v8
    v_lshl_add_u32 v1, v6, 8, v8
    v_xor_b32 v2, 64, v1
    v_xor_b32 v3, 0x80, v1
    v_xor_b32 v4, 0xc0, v1
    {"v_lshlrev_b32 v1, 4, v0; v_mov_b32 v2, v1; v_mov_b32 v3, v1; v_mov_b32 v4, v1".replace("; ", chr(10)) if "s" in abl else ""}
    s_lshl_b32 s40, s38, 21
    s_lshl_b32 s41, s39, 18
    s_add_u32 s40, s40, s41
    s_lshl_b32 s41, s36, 13
    s_add_u32 s40, s40, s41
    s_sub_u32 s18, 0x40000, s41
    s_mov_b32 s19, 0x20000
    s_mul_i32 s37, s36, {R*8192}
    s_add_u32 s37, s37, {RING0}
    s_mov_b32 s44, 0x1000
    s_mov_b32 m0, s37
    s_lshl_b32 s42, s38, 2
    s_add_u32 s42, s42, s36
    s_cmp_lg_u32 s2, 0
    s_waitcnt lgkmcnt(0)
    s_mov_b32 s28, s14
    s_mov_b32 s29, s15
    s_mov_b32 s30, {WS_BYTES}
    s_mov_b32 s31, 0x20000
    s_cbranch_scc1 L_noclear
    v_lshlrev_b32 v9, 4, v0
    v_mov_b32 v{T0}, 0
    v_mov_b32 v{T0+1}, 0
    v_mov_b32 v{T0+2}, 0
    v_mov_b32 v{T0+3}, 0
    s_lshl_b32 s43, s36, 12
    """)
    for i in range(4):
        g.vmop(f"buffer_store_dwordx4 v[{T0}:{T0+3}], v9, s[28:31], s43 offen offset:{i*1024} {sc}", "clear", True)
    A("""
    L_noclear:
    s_add_u32 s16, s6, s40
    s_addc_u32 s17, s7, 0
    """)
    items = [("k", t) for t in range(8)] + [("v", t) for t in range(8)]
    def issue(n, first=False):
        kind, t = items[n]; slot = n % R
        srd = "s[16:19]" if kind == "k" else "s[20:23]"
        for half in range(2):
            if first and half == 0:
                so = "0"
            elif first:
                so = "s44"; A(f"s_add_u32 m0, s37, {slot*8192 + 4096}"); A("s_nop 0")
            else:
                so = "s44"
                A(f"s_add_u32 m0, s37, {slot*8192 + half*4096}")
                A(f"s_mov_b32 s44, {t*32768 + half*4096}")
            for i in range(4):
                va = vKsrc[i] if kind == "k" else vVsrc
                g.vmop(f"buffer_load_dwordx4 v{va}, {srd}, {so} offen offset:{i*1024} {flags} lds", f"it{n}")
    issue(0, first=True)
    A(f"""
    s_lshl_b32 s41, s38, 13
    s_add_u32 s24, s4, s41
    s_addc_u32 s25, s5, 0
    s_mov_b32 s26, 0x2000
    s_mov_b32 s27, 0x20000
    s_and_b32 s41, s36, 1
    s_lshl_b32 s41, s41, 7
    v_xor_b32 v9, s41, v1
    v_xor_b32 v10, s41, v2
    s_lshl_b32 s41, s36, 11
    s_mov_b32 m0, s41
    s_add_u32 s20, s8, s40
    s_addc_u32 s21, s9, 0
    s_mov_b32 s22, s18
    s_mov_b32 s23, 0x20000
    """)
    g.vmop("buffer_load_dwordx4 v9, s[24:27], s41 offen lds", "q")
    g.vmop("buffer_load_dwordx4 v10, s[24:27], s41 offen offset:1024 lds", "q")
    for n in range(1, R): issue(n)
    if prefetch_code:
        A("s_getpc_b64 s[46:47]\nv_lshlrev_b32 v9, 7, v0")
        g.vmop("global_load_dword v255, v9, s[46:47]", "code")
    A(f"""
    v_lshlrev_b32 v8, 2, v6
    v_xor_b32 v8, v7, v8
    v_lshlrev_b32 v8, 4, v8
    v_lshl_add_u32 v{vVsrc}, v6, 8, v8
    {"v_mov_b32 v5, v1" if "s" in abl else ""}
    v_lshrrev_b32 v{T0}, 5, v0
    v_and_b32 v{T0+1}, 31, v0
    v_xor_b32 v{T0+2}, v{T0}, v7
    v_lshlrev_b32 v{T0+2}, 4, v{T0+2}
    v_bfe_u32 v{T0+3}, v0, 2, 2
    v_lshl_add_u32 v{T0+4}, v{T0}, 2, v{T0+3}
    v_xor_b32 v{T0+5}, s36, v{T0+3}
    v_lshlrev_b32 v{T0+5}, 6, v{T0+5}
    v_lshl_add_u32 v{T0+5}, v{T0+4}, 8, v{T0+5}
    v_and_b32 v{T0+6}, 1, v6
    v_lshl_add_u32 v{T0+5}, v{T0+6}, 5, v{T0+5}
    v_and_b32 v{T0+6}, 3, v0
    v_lshl_add_u32 v{T0+5}, v{T0+6}, 3, v{T0+5}
    v_add_u32 v{vVrd[0]}, s37, v{T0+5}
    v_xor_b32 v{vVrd[1]}, 64, v{vVrd[0]}
    v_xor_b32 v{vVrd[2]}, 0x80, v{vVrd[0]}
    v_xor_b32 v{vVrd[3]}, 0xc0, v{vVrd[0]}
    v_lshl_add_u32 v{vKrd[0]}, v{T0+1}, 8, v{T0+2}
    """)
    for j in range(1, 8): A(f"v_xor_b32 v{vKrd[j]}, {j*32}, v{vKrd[0]}")
    A(f"""
    s_mov_b32 s45, {hex(f2u(C))}
    s_mov_b32 s32, s12
    s_mov_b32 s33, s13
    s_mov_b32 s34, 0x100
    s_mov_b32 s35, 0x20000
    v_mov_b32 v{vM}, 0xff800000
    v_mov_b32 v{T0+8}, 0
    {'v_add_u32 v%d, 0x80, v%d' % (T0+8, T0+8) if hdiag else ''}
    """)
    g.wait_vm("q")
    stamp()
    A("s_barrier")
    A("s_or_b32 s41, s2, s36\ns_cbranch_scc1 L_nosig")
    A(f"v_mov_b32 v{T0+9}, 1\ns_mov_b64 exec, 1")
    g.vmop(f"buffer_store_dword v{T0+9}, v{T0+8}, s[32:35], 0 offen {sc}", "sig", True)
    A("s_mov_b64 exec, -1")
    A("L_nosig:")
    for j in range(8): A(f"ds_read_b128 v[{Q0+4*j}:{Q0+4*j+3}], v{vKrd[j]}")
    for j in range(8): A(f"v_add_u32 v{vKrd[j]}, s37, v{vKrd[j]}")
    def maxtile(t):
        b = S0 + 16 * t
        for r in range(0, 16, 2): A(f"v_max3_f32 v{vM}, v{b+r}, v{b+r+1}, v{vM}")
    def ptile(t):
        b = S0 + 16 * t
        for r in range(16): A(f"v_fma_f32 v{b+r}, v{b+r}, s45, -v{vM}")
        for r in range(16): A(f"v_exp_f32 v{b+r}, v{b+r}")
        for r in range(16):
            if t == 0 and r == 0: continue
            if t == 0 and r == 1: A(f"v_add_f32 v{vL}, v{b}, v{b+1}")
            else: A(f"v_add_f32 v{vL}, v{vL}, v{b+r}")
        for k in range(8): A(f"v_cvt_pk_bf16_f32 v{b+k}, v{b+2*k}, v{b+2*k+1}")
    def refill(n):
        if n == pretouch:
            A(f"""
            v_mov_b32 v{VF0}, 0
            v_mov_b32 v{VF0+1}, 0
            v_mov_b32 v{VF0+2}, 0
            v_mov_b32 v{VF0+3}, 0
            v_lshlrev_b32 v{VF0+4}, 4, v0
            s_lshl_b32 s50, s42, {10 if fm == "line" else 7}
            s_add_u32 s50, s50, {FL2 if fm == "line" else 0}
            s_lshl_b32 s41, s39, 7
            s_add_u32 s51, s50, s41
            {"s_cmp_eq_u32 s39, 0; s_cbranch_scc0 L_nopt".replace("; ", chr(10)) if fm != "line" else ""}
            s_mov_b64 exec, 0xff
            """)
            g.vmop(f"buffer_store_dwordx4 v[{VF0}:{VF0+3}], v{VF0+4}, s[28:31], s51 offen {sc}", "pt", True)
            A("s_mov_b64 exec, -1\nL_nopt:")
        if n == bigclear:
            A(f"""
            v_mov_b32 v{VF0}, -1
            v_mov_b32 v{VF0+1}, -1
            v_mov_b32 v{VF0+2}, -1
            v_mov_b32 v{VF0+3}, -1
            v_lshlrev_b32 v{VF0+4}, 4, v0
            s_lshl_b32 s46, s42, 15
            s_lshl_b32 s41, s39, 12
            s_add_u32 s46, s46, s41
            s_add_u32 s46, s46, {DATA_OFF}
            s_lshl_b32 s48, s42, 11
            s_lshl_b32 s41, s39, 8
            s_add_u32 s48, s48, s41
            s_add_u32 s48, s48, {ML_OFF}
            v_lshlrev_b32 v{VF0+5}, 2, v0
            """)
            for i in range(4): g.vmop(f"buffer_store_dwordx4 v[{VF0}:{VF0+3}], v{VF0+4}, s[28:31], s46 offen offset:{i*1024} {sc}", "bc")
            g.vmop(f"buffer_store_dword v{VF0}, v{VF0+5}, s[28:31], s48 offen {sc}", "bc")
        if n + R < 16:
            if n + R == chk_item:
                g.vmop(f"buffer_load_dword v{T0+10}, v{T0+8}, s[32:35], 0 offen", "chk")
            issue(n + R)
    for t in range(8):
        n = t; slot = n % R
        if t > 0: g.wait_vm(f"it{n}")
        for j in range(8): A(f"ds_read_b128 v[{KF0+4*j}:{KF0+4*j+3}], v{vKrd[j]} offset:{slot*8192}")
        if t > 0:
            A("s_nop 3")
            maxtile(t - 1)
        A("s_waitcnt lgkmcnt(0)")
        refill(n)
        b = S0 + 16 * t
        for j in range(8):
            c = "0" if j == 0 else f"v[{b}:{b+15}]"
            A(f"v_mfma_f32_32x32x16_bf16 v[{b}:{b+15}], v[{KF0+4*j}:{KF0+4*j+3}], v[{Q0+4*j}:{Q0+4*j+3}], {c}")
    stamp()
    A("s_nop 11")
    maxtile(7)
    A(f"""
    v_mov_b32 v{T0}, v{vM}
    s_nop 1
    v_permlane32_swap_b32 v{T0}, v{vM}
    v_max_f32 v{vM}, v{T0}, v{vM}
    v_mul_f32 v{vM}, s45, v{vM}
    """)
    for t in range(8):
        n = 8 + t; slot = n % R
        ptile(t)
        if t == 7:
            A(f"""
            v_mov_b32 v{T0}, v{vL}
            v_lshlrev_b32 v{T0+1}, 3, v0
            s_lshl_b32 s41, s36, 9
            v_permlane32_swap_b32 v{T0}, v{vL}
            v_add_u32 v{T0+2}, s41, v{T0+1}
            v_add_f32 v{vL}, v{T0}, v{vL}
            ds_write_b64 v{T0+2}, v[{vM}:{vL}] offset:8192
            """)
            A(f"v_lshlrev_b32 v{T0+3}, 4, v0")
            A(f"v_add_u32 v{vKrd[0]}, s37, v{T0+3}")
            for j in range(1, 4):
                A(f"s_xor_b32 s41, s36, {j}")
                A(f"s_mul_i32 s43, s41, {R*8192}")
                A(f"s_add_u32 s43, s43, {RING0 + (j-1)*4096}")
                A(f"v_add_u32 v{vKrd[j]}, s43, v{T0+3}")
                A(f"s_lshl_b32 s41, s41, 9")
                A(f"v_add_u32 v{vKrd[3+j]}, s41, v{T0+1}")
            A(f"""
            v_bfe_u32 v{T0+4}, v0, 2, 3
            v_and_b32 v{T0+5}, 3, v0
            v_lshrrev_b32 v{T0+6}, 5, v0
            v_lshlrev_b32 v1, 12, v{T0+4}
            v_lshl_add_u32 v1, v{T0+6}, 6, v1
            v_lshl_add_u32 v1, v{T0+5}, 4, v1
            v_lshlrev_b32 v2, 3, v0
            s_lshl_b32 s46, s42, 15
            s_lshl_b32 s41, s39, 9
            s_add_u32 s47, s46, s41
            s_add_u32 s47, s47, {DATA_OFF}
            s_lshl_b32 s41, s39, 12
            s_add_u32 s46, s46, s41
            s_add_u32 s46, s46, {DATA_OFF}
            s_lshl_b32 s48, s42, 11
            s_lshl_b32 s41, s39, 8
            s_add_u32 s49, s48, s41
            s_add_u32 s49, s49, {ML_OFF}
            s_lshl_b32 s41, s39, 5
            s_add_u32 s48, s48, s41
            s_add_u32 s48, s48, {ML_OFF}
            s_lshl_b32 s50, s42, 7
            s_lshl_b32 s41, s39, 2
            s_add_u32 s51, s50, s41
            v_and_b32 v3, 7, v0
            v_lshlrev_b32 v3, 2, v3
            v_bfe_u32 v4, v0, 1, 2
            v_lshlrev_b32 v5, 8, v4
            v_lshlrev_b32 v4, 3, v4
            v_lshrrev_b32 v{T0+4}, 3, v0
            v_lshl_add_u32 v5, v{T0+4}, 3, v5
            v_and_b32 v{T0+4}, 1, v0
            v_lshl_add_u32 v5, v{T0+4}, 2, v5
            s_lshl_b32 s41, s38, 13
            s_lshl_b32 s43, s39, 10
            s_add_u32 s41, s41, s43
            s_add_u32 s24, s10, s41
            s_addc_u32 s25, s11, 0
            s_mov_b32 s26, 0x400
            s_lshl_b32 s52, s36, 6
            """)
        if n == chk_item:
            g.wait_vm(f"it{n}")
            A(f"""
            s_mov_b32 s43, {spin}
            L_chk:
            v_readfirstlane_b32 s41, v{T0+10}
            s_cmp_lg_u32 s41, 0
            s_cbranch_scc1 L_chk_ok
            s_sleep 8
            buffer_load_dword v{T0+10}, v{T0+8}, s[32:35], 0 offen {sc}
            s_sub_u32 s43, s43, 1
            s_cmp_lg_u32 s43, 0
            s_waitcnt vmcnt(0)
            s_cbranch_scc1 L_chk
            L_chk_ok:
            """)
        else:
            g.wait_vm(f"it{n}")
        if t == 7: stamp()
        if fm == "gate" and t == early:
            A(f"s_lshl_b32 s53, s42, 7\ns_add_u32 s53, s53, {FL2}\nv_mov_b32 v{T0+11}, 1\ns_mov_b64 exec, 1")
            g.vmop(f"buffer_atomic_add v{T0+11}, v{T0+8}, s[28:31], s53 offen {asc}", "arr")
            A("s_mov_b64 exec, -1")
        order = [(ks, j) for j in (1, 2, 3, 0) for ks in range(2)]
        for ks, j in order:
            r = VF0 + (ks * 4 + j) * 4
            for s in range(2):
                A(f"ds_read_b64_tr_b16 v[{r+2*s}:{r+2*s+1}], v{vVrd[j]} offset:{slot*8192 + ks*4096 + s*2048}")
        if n + R < 16:
            A("s_waitcnt lgkmcnt(0)")
            refill(n)
        b = S0 + 16 * t
        for idx, (ks, j) in enumerate(order):
            r = VF0 + (ks * 4 + j) * 4; o = O0 + 16 * j
            c = "0" if (t == 0 and ks == 0) else f"v[{o}:{o+15}]"
            if n + R >= 16: A(f"s_waitcnt lgkmcnt({14 - 2*idx})")
            A(f"v_mfma_f32_32x32x16_bf16 v[{o}:{o+15}], v[{r}:{r+3}], v[{b+4*ks}:{b+4*ks+3}], {c}")
    A("s_nop 5")
    for j in range(1, 4):
        for q in range(4):
            o = O0 + 16 * j + 4 * q
            A(f"ds_write_b128 v{vKrd[0]}, v[{o}:{o+3}] offset:{(j-1)*4096 + q*1024}")
    A("s_waitcnt lgkmcnt(0)\ns_barrier")
    X0 = S0
    ML = S0 + 48
    F = S0 + 56
    for j in range(1, 4): A(f"ds_read_b64 v[{ML+2*(j-1)}:{ML+2*(j-1)+1}], v{vKrd[3+j]} offset:8192")
    for j in range(1, 4):
        for q in range(4):
            x = X0 + 16 * (j - 1) + 4 * q
            A(f"ds_read_b128 v[{x}:{x+3}], v{vKrd[j]} offset:{q*1024}")
    A(f"""
    s_waitcnt lgkmcnt(12)
    v_max3_f32 v{F+4}, v{ML}, v{ML+2}, v{ML+4}
    v_max_f32 v{F+4}, v{F+4}, v{vM}
    v_sub_f32 v{F}, v{vM}, v{F+4}
    v_sub_f32 v{F+1}, v{ML}, v{F+4}
    v_sub_f32 v{F+2}, v{ML+2}, v{F+4}
    v_sub_f32 v{F+3}, v{ML+4}, v{F+4}
    v_exp_f32 v{F}, v{F}
    v_exp_f32 v{F+1}, v{F+1}
    v_exp_f32 v{F+2}, v{F+2}
    v_exp_f32 v{F+3}, v{F+3}
    v_mul_f32 v{F+5}, v{F}, v{vL}
    v_fmac_f32 v{F+5}, v{F+1}, v{ML+1}
    v_fmac_f32 v{F+5}, v{F+2}, v{ML+3}
    v_fmac_f32 v{F+5}, v{F+3}, v{ML+5}
    """)
    A("s_mov_b32 exec_hi, 0")
    g.vmop(f"buffer_store_dwordx2 v[{F+4}:{F+5}], v2, s[28:31], s49 offen {sc}", "st")
    A("s_mov_b32 exec_hi, -1")
    for r in range(16): A(f"v_mul_f32 v{O0+r}, v{F}, v{O0+r}")
    for j in range(1, 3):
        A(f"s_waitcnt lgkmcnt({12 - 4*j})")
        for r in range(16): A(f"v_fmac_f32 v{O0+r}, v{F+j}, v{X0+16*(j-1)+r}")
    for q in range(4):
        A(f"s_waitcnt lgkmcnt({3 - q})")
        for r in range(4*q, 4*q + 4): A(f"v_fmac_f32 v{O0+r}, v{F+3}, v{X0+32+r}")
        g.vmop(f"buffer_store_dwordx4 v[{O0+4*q}:{O0+4*q+3}], v1, s[28:31], s47 offen offset:{q*128} {sc}", "st")
    stamp()
    D0 = S0; E0 = S0 + 16; W0 = S0 + 32
    if fm == "gate":
        A(f"""
        s_mov_b64 exec, 1
        s_mov_b32 s43, {spin}
        L_gate:
        v_mov_b32 v{T0+4}, 0
        s_sub_u32 s43, s43, 1
        buffer_atomic_add v{T0+4}, v{T0+8}, s[28:31], s53 offen sc0 {asc}
        s_cmp_eq_u32 s43, 0
        s_cbranch_scc1 L_gate_ok
        s_waitcnt vmcnt(0)
        v_cmp_ne_u32 vcc, 7, v{T0+4}
        s_cbranch_vccnz L_gate
        L_gate_ok:
        s_mov_b64 exec, -1
        """)
    if fm not in ("self", "gate"):
        A(f"v_mov_b32 v{T0+4}, 1\nv_mov_b32 v{T0+5}, 1\nv_mov_b32 v{T0+6}, 1\nv_mov_b32 v{T0+7}, 1\nv_mov_b32 v{T0+2}, 0")
        if fm == "line":
            A(f"""
            v_lshlrev_b32 v{T0+2}, 4, v0
            v_lshlrev_b32 v3, 7, v0
            s_lshl_b32 s50, s42, 10
            s_add_u32 s50, s50, {FL2}
            s_lshl_b32 s41, s39, 7
            s_add_u32 s51, s50, s41
            """)
        if fm == "priv":
            A(f"""
            v_lshrrev_b32 v{T0+2}, 3, v0
            v_lshlrev_b32 v{T0+2}, 10, v{T0+2}
            v_and_b32 v3, 7, v0
            v_lshl_add_u32 v{T0+2}, v3, 4, v{T0+2}
            v_lshlrev_b32 v3, 7, v0
            s_lshl_b32 s50, s42, 13
            s_add_u32 s50, s50, {FL2}
            s_lshl_b32 s41, s39, 7
            s_add_u32 s51, s50, s41
            s_lshl_b32 s41, s39, 10
            s_add_u32 s50, s50, s41
            """)
        g.wait_vm("st")
        stamp()
        if fm == "atom":
            A(f"""
            s_mov_b64 exec, 1
            s_mov_b32 s43, {spin}
            buffer_atomic_add v{T0+4}, v{T0+2}, s[28:31], s50 offen sc0 {asc}
            s_waitcnt vmcnt(0)
            v_cmp_eq_u32 vcc, 7, v{T0+4}
            s_cbranch_vccnz L_poll_ok
            L_poll:
            v_mov_b32 v{T0+4}, 0
            s_sub_u32 s43, s43, 1
            buffer_atomic_add v{T0+4}, v{T0+2}, s[28:31], s50 offen sc0 {asc}
            s_cmp_eq_u32 s43, 0
            s_cbranch_scc1 L_poll_ok
            s_waitcnt vmcnt(0)
            v_cmp_ne_u32 vcc, 8, v{T0+4}
            s_cbranch_vccnz L_poll
            L_poll_ok:
            s_mov_b64 exec, -1
            """)
        elif fm == "shared":
            A(f"s_mov_b64 exec, 1\nbuffer_store_dword v{T0+4}, v{T0+2}, s[28:31], s51 offen {sc}")
        elif fm == "line":
            A(f"s_mov_b64 exec, 0xff\nbuffer_store_dwordx4 v[{T0+4}:{T0+7}], v{T0+2}, s[28:31], s51 offen {sc}")
        else:
            A(f"buffer_store_dwordx4 v[{T0+4}:{T0+7}], v{T0+2}, s[28:31], s51 offen {sc}")
        if fm != "atom": A(f"""
        s_mov_b64 exec, 0xff
        s_mov_b32 s43, {spin}
        L_poll:
        buffer_load_dword v{T0+3}, v3, s[28:31], s50 offen {psc}
        s_sub_u32 s43, s43, 1
        s_cmp_eq_u32 s43, 0
        s_cbranch_scc1 L_poll_ok
        s_waitcnt vmcnt(0)
        v_cmp_ne_u32 vcc, 1, v{T0+3}
        {f"s_cbranch_vccz L_poll_ok; s_sleep {psleep}; s_branch L_poll".replace("; ", chr(10)) if psleep else "s_cbranch_vccnz L_poll"}
        L_poll_ok:
        s_mov_b64 exec, -1
        """)
        stamp()
    else:
        stamp()
        A(f"s_mov_b32 s43, {spin}\nL_poll:")
    for i in range(8): A(f"buffer_load_dwordx2 v[{E0+2*i}:{E0+2*i+1}], v4, s[28:31], s48 offen offset:{i*256} {dsc}")
    for i in range(8): A(f"buffer_load_dwordx2 v[{D0+2*i}:{D0+2*i+1}], v{T0+1}, s[28:31], s46 offen offset:{i*512} {dsc}")
    if fm in ("self", "gate"):
        A(f"""
        s_sub_u32 s43, s43, 1
        s_cmp_eq_u32 s43, 0
        s_cbranch_scc1 L_poll_ok
        s_waitcnt vmcnt(8)
        v_max3_u32 v{W0}, v{E0}, v{E0+1}, v{E0+2}
        v_max3_u32 v{W0+1}, v{E0+3}, v{E0+4}, v{E0+5}
        """)
        for k in range(3, 8): A(f"v_max3_u32 v{W0+(k&1)}, v{E0+2*k}, v{E0+2*k+1}, v{W0+(k&1)}")
        for k in range(8): A(f"s_waitcnt vmcnt({7-k})\nv_max3_u32 v{W0+(k&1)}, v{D0+2*k}, v{D0+2*k+1}, v{W0+(k&1)}")
        A(f"""
        v_max_u32 v{W0}, v{W0}, v{W0+1}
        v_cmp_eq_u32 vcc, -1, v{W0}
        s_cbranch_vccnz L_poll
        L_poll_ok:
        """)
        stamp()
    A(f"""
    s_waitcnt vmcnt(8)
    v_max3_f32 v{W0+8}, v{E0}, v{E0+2}, v{E0+4}
    v_max3_f32 v{W0+9}, v{E0+6}, v{E0+8}, v{E0+10}
    v_max3_f32 v{W0+8}, v{E0+12}, v{E0+14}, v{W0+8}
    v_max_f32 v{W0+8}, v{W0+8}, v{W0+9}
    """)
    for i in range(8): A(f"v_sub_f32 v{W0+i}, v{E0+2*i}, v{W0+8}")
    for i in range(8): A(f"v_exp_f32 v{W0+i}, v{W0+i}")
    A(f"v_mul_f32 v{W0+9}, v{W0}, v{E0+1}")
    for i in range(1, 8): A(f"v_fmac_f32 v{W0+9}, v{W0+i}, v{E0+2*i+1}")
    A(f"v_rcp_f32 v{W0+9}, v{W0+9}")
    A("s_waitcnt vmcnt(7)")
    A(f"v_mul_f32 v{W0+10}, v{W0}, v{D0}\nv_mul_f32 v{W0+11}, v{W0}, v{D0+1}")
    for i in range(1, 8):
        A(f"s_waitcnt vmcnt({7-i})")
        A(f"v_fmac_f32 v{W0+10}, v{W0+i}, v{D0+2*i}\nv_fmac_f32 v{W0+11}, v{W0+i}, v{D0+2*i+1}")
    stamp()
    A(f"""
    v_mul_f32 v{W0+10}, v{W0+10}, v{W0+9}
    v_mul_f32 v{W0+11}, v{W0+11}, v{W0+9}
    v_cvt_pk_bf16_f32 v{W0+10}, v{W0+10}, v{W0+11}
    buffer_store_dword v{W0+10}, v5, s[24:27], s52 offen {osc}
    """)
    if diag:
        A("L_diag:")
        A("s_waitcnt vmcnt(0)")
        stamp()
        A("s_getreg_b32 s41, hwreg(HW_REG_XCC_ID)")
        A(f"s_lshl_b32 s43, s2, 2\ns_add_u32 s43, s43, s36\ns_lshl_b32 s43, s43, 6\ns_add_u32 s43, s43, {DIAG_OFF}")
        A("s_waitcnt lgkmcnt(0)\nv_mov_b32 v1, 0")
        for k in range(nst[0]):
            A(f"v_mov_b32 v2, s{64+2*k}\nbuffer_store_dword v2, v1, s[28:31], s43 offen offset:{4*k}")
        A(f"v_mov_b32 v2, s41\nbuffer_store_dword v2, v1, s[28:31], s43 offen offset:60")
    if hdiag:
        A("s_waitcnt vmcnt(0)")
        stamp()
        A("s_waitcnt lgkmcnt(0)\nv_mov_b32 v1, 0\ns_mov_b64 exec, 1")
        for k in range(1, nst[0]):
            A(f"s_sub_u32 s41, s{64+2*k}, s64\nv_mov_b32 v2, s41\nbuffer_atomic_umax v2, v1, s[32:35], 0 offen offset:{4*k}")
    A("L_end:\ns_endpgm")
    out.append(g.text())
    out.append(f""".section .rodata,"a"
.p2align 6
.amdhsa_kernel standalone__gqa_softmax__sampling_kernel
  .amdhsa_next_free_vgpr 256
  .amdhsa_next_free_sgpr 96
  .amdhsa_accum_offset 256
  .amdhsa_group_segment_fixed_size 0
  .amdhsa_kernarg_size 48
  .amdhsa_user_sgpr_count 2
  .amdhsa_user_sgpr_kernarg_segment_ptr 1
  .amdhsa_system_sgpr_workgroup_id_x 1
  .amdhsa_float_denorm_mode_32 3
.end_amdhsa_kernel
""")
    return "\n".join(out)

if __name__ == "__main__":
    cfg = json.loads(sys.argv[1]) if len(sys.argv) > 1 else {}
    print(gen(**cfg))
```

```python
import sys, json, struct, math

HEADER = """; GQA decode attention, B=8 Hq=32 Hkv=4 Sq=4 Sk=8192 D=128, bf16 in / bf16 out.
;
"""

def f2u(x): return struct.unpack("<I", struct.pack("<f", x))[0]

def gen(spin=1 << 21, W=11, bq=10, t1=4, t2=6, pgap=4, psched=(1, 1, 2, 2, 2), ml_step=5,
        perm=(4, 5, 7, 0, 1, 2, 3, 6), diag=False):
    L = []
    def A(s):
        for ln in s.split("\n"):
            ln = ln.strip()
            if ln: L.append(("" if ln.endswith(":") else "    ") + ln)
    R = 4
    PBUF, MLBUF, RING0 = 0, 16384, 20480
    lds = RING0 + 4 * R * 8192
    C = math.log2(math.e) / math.sqrt(128.0)
    ML_OFF, DATA_OFF, DIAG_OFF = 0x10000, 0x80000, 0x800000
    WS_BYTES = 0x900000 if diag else DATA_OFF + 0x200000
    vKsrc = [1, 2, 3, 4]; vVsrc = 5; vKrd = list(range(6, 14)); vVrd = [14, 15, 16, 17]
    vM, vL = 18, 19
    Q0, KF0, S0, VF0, T0 = 20, 52, 84, 212, 244
    O0 = 20; PB = [36, 60]
    vPw, vPr, vMLw, vMLr = 6, [7, 8, 9], 10, [11, 12, 13]
    vZero, vPA, vPB = T0 + 8, T0 + 9, T0 + 10
    nst = [0]
    def stamp():
        if diag and nst[0] < 15:
            A(f"s_memrealtime s[{64+2*nst[0]}:{65+2*nst[0]}]"); nst[0] += 1
    dec = []; k = 0; first = True
    while k < 8:
        n = 1
        while k + n < 8 and perm[k + n] == perm[k] + n: n += 1
        dst = "s40" if first else "s41"
        dec.append(f"s_bfe_u32 {dst}, s2, {hex((n << 16) | k)}")
        if perm[k]: dec.append(f"s_lshl_b32 {dst}, {dst}, {perm[k]}")
        if not first: dec.append("s_or_b32 s40, s40, s41")
        first = False; k += n
    stamp()
    A(f"""
    s_load_dwordx8 s[4:11], s[0:1], 0
    s_load_dwordx2 s[28:29], s[0:1], 40
    s_cmp_ge_u32 s2, 0x100
    s_cbranch_scc1 L_end
    v_lshrrev_b32 v1, 6, v0
    v_and_b32 v0, 63, v0
    v_readfirstlane_b32 s36, v1
    {chr(10).join(dec)}
    s_lshr_b32 s38, s40, 3
    s_and_b32 s39, s40, 7
    s_lshl_b32 s40, s40, 18
    v_lshrrev_b32 v6, 4, v0
    v_and_b32 v7, 15, v0
    v_xor_b32 v8, v7, v6
    v_lshlrev_b32 v8, 4, v8
    v_lshl_add_u32 v1, v6, 8, v8
    v_xor_b32 v2, 64, v1
    v_xor_b32 v3, 0x80, v1
    v_xor_b32 v4, 0xc0, v1
    s_mov_b32 s18, 0x40000
    s_mov_b32 s19, 0x20000
    s_lshl_b32 s37, s36, 15
    s_add_u32 s37, s37, {RING0}
    s_lshl_b32 s44, s36, 13
    s_mov_b32 m0, s37
    s_add_u32 s43, s44, 0x1000
    s_cmp_eq_u32 s36, 4
    s_waitcnt lgkmcnt(0)
    s_cbranch_scc1 L_loader
    s_add_u32 s16, s6, s40
    s_addc_u32 s17, s7, 0
    """)
    for i in range(4): A(f"buffer_load_dwordx4 v{vKsrc[i]}, s[16:19], s44 offen offset:{i*1024} nt lds")
    A("s_add_u32 m0, s37, 4096\ns_lshl_b32 s41, s38, 13")
    for i in range(4): A(f"buffer_load_dwordx4 v{vKsrc[i]}, s[16:19], s43 offen offset:{i*1024} nt lds")
    A(f"""
    s_add_u32 s24, s4, s41
    s_addc_u32 s25, s5, 0
    s_mov_b32 s26, 0x2000
    s_mov_b32 s27, 0x20000
    s_and_b32 s41, s36, 1
    s_lshl_b32 s41, s41, 7
    v_xor_b32 v9, s41, v1
    v_xor_b32 v10, s41, v2
    s_lshl_b32 s41, s36, 11
    s_mov_b32 m0, s41
    s_mov_b32 s30, {hex(WS_BYTES)}
    s_mov_b32 s31, 0x20000
    buffer_load_dwordx4 v9, s[24:27], s41 offen lds
    buffer_load_dwordx4 v10, s[24:27], s41 offen offset:1024 lds
    s_branch L_compute
    L_loader:
    s_setprio 3
    s_add_u32 s16, s6, s40
    s_addc_u32 s17, s7, 0
    s_add_u32 s20, s8, s40
    s_addc_u32 s21, s9, 0
    s_mov_b32 s22, 0x40000
    s_mov_b32 s23, 0x20000
    v_lshlrev_b32 v8, 2, v6
    v_xor_b32 v8, v7, v8
    v_lshlrev_b32 v8, 4, v8
    v_lshl_add_u32 v{vVsrc}, v6, 8, v8
    """)
    groups = []
    for n in range(1, 16):
        if n == 15: groups += [(n, w, h) for h in range(2) for w in range(4)]
        else: groups += [(n, w, h) for w in range(4) for h in range(2)]
    NG = len(groups)
    rowname = lambda n: f"K row {n}" if n < 8 else f"V row {n-8}"
    ev = [(8 * n, n, rowname(n) + " landed") for n in range(1, 15)] + [(8 * 14 + 4, 15, "first half of V row 7 landed"), (8 * 15, 15, "V row 7 landed")]
    extra = {}
    extra.setdefault(bq, []).append("Q and K row 0 landed")
    k7 = 8 * 7 + W - 1
    extra.setdefault(k7 + t1, []).append("row max exchange"); extra.setdefault(k7 + t2, []).append("first P tile")
    assert t1 <= t2 < 8 and bq < 8 + W - 1
    freed = R; nbar = 0
    for gi in range(NG):
        if gi >= W - 1:
            landed = gi - (W - 1)
            A(f"s_waitcnt vmcnt({4*(W-1)})")
            while ev and ev[0][0] <= landed:
                A(f"s_barrier ; {ev[0][2]}"); nbar += 1
                freed = ev[0][1] + R
                ev.pop(0)
        for nm in extra.pop(gi, []):
            A(f"s_barrier ; {nm}"); nbar += 1
        n, w, h = groups[gi]
        assert n < freed, (gi, n, freed)
        kind, t = ("k", n) if n < 8 else ("v", n - 8)
        srd = "s[16:19]" if kind == "k" else "s[20:23]"
        A(f"s_mov_b32 m0, {RING0 + w*R*8192 + (n % R)*8192 + h*4096}")
        A(f"s_mov_b32 s44, {t*32768 + w*8192 + h*4096}")
        for i in range(4):
            va = vKsrc[i] if kind == "k" else vVsrc
            A(f"buffer_load_dwordx4 v{va}, {srd}, s44 offen offset:{i*1024} nt lds")
    assert not extra
    for need, n, nm in ev:
        A(f"s_waitcnt vmcnt({4*(NG - need)})\ns_barrier ; {nm}"); nbar += 1
    assert nbar == 19, nbar
    A(f"""
    s_endpgm
    L_compute:
    v_lshrrev_b32 v{T0}, 5, v0
    v_and_b32 v{T0+1}, 31, v0
    v_xor_b32 v{T0+2}, v{T0}, v7
    v_lshlrev_b32 v{T0+2}, 4, v{T0+2}
    v_bfe_u32 v{T0+3}, v0, 2, 2
    v_lshl_add_u32 v{T0+4}, v{T0}, 2, v{T0+3}
    v_xor_b32 v{T0+5}, s36, v{T0+3}
    v_lshlrev_b32 v{T0+5}, 6, v{T0+5}
    v_lshl_add_u32 v{T0+5}, v{T0+4}, 8, v{T0+5}
    v_and_b32 v{T0+6}, 1, v6
    v_lshl_add_u32 v{T0+5}, v{T0+6}, 5, v{T0+5}
    v_and_b32 v{T0+6}, 3, v0
    v_lshl_add_u32 v{T0+5}, v{T0+6}, 3, v{T0+5}
    v_add_u32 v{vVrd[0]}, s37, v{T0+5}
    """)
    for j in range(1, 4):
        A(f"""
        s_xor_b32 s41, s36, {j}
        s_lshl_b32 s41, s41, 15
        s_add_u32 s41, s41, {RING0}
        v_add_u32 v{vVrd[j]}, s41, v{T0+5}
        """)
    A(f"v_lshl_add_u32 v{vKrd[0]}, v{T0+1}, 8, v{T0+2}")
    for j in range(1, 8): A(f"v_xor_b32 v{vKrd[j]}, {j*32}, v{vKrd[0]}")
    A(f"""
    s_mov_b32 s45, {hex(f2u(C))}
    v_mov_b32 v{vM}, 0xff800000
    v_mov_b32 v{vZero}, 0
    s_lshl_b32 s42, s38, 2
    s_add_u32 s42, s42, s36
    s_lshl_b32 s50, s42, 7
    s_lshl_b32 s48, s38, 11
    s_lshl_b32 s41, s39, 8
    s_add_u32 s49, s48, s41
    s_add_u32 s49, s49, {hex(ML_OFF)}
    s_lshl_b32 s41, s39, 5
    s_add_u32 s48, s48, s41
    s_add_u32 s48, s48, {hex(ML_OFF)}
    s_lshl_b32 s46, s42, 14
    s_lshl_b32 s41, s39, 8
    s_add_u32 s47, s46, s41
    s_add_u32 s47, s47, {hex(DATA_OFF)}
    s_lshl_b32 s41, s39, 11
    s_add_u32 s46, s46, s41
    s_add_u32 s46, s46, {hex(DATA_OFF)}
    s_lshl_b32 s52, s36, 6
    s_lshl_b32 s55, 1, s39
    s_movk_i32 s54, 0xff
    s_mov_b32 s43, {hex(spin)}
    v_lshlrev_b32 v2, 3, v0
    v_bfe_u32 v{T0+4}, v0, 2, 3
    v_lshlrev_b32 v1, 11, v{T0+4}
    v_lshl_add_u32 v1, v{T0}, 6, v1
    v_lshl_add_u32 v1, v{T0+6}, 4, v1
    v_lshlrev_b32 v3, 4, v0
    v_lshrrev_b32 v4, 4, v0
    v_lshlrev_b32 v4, 8, v4
    v_lshl_add_u32 v4, v{T0+6}, 3, v4
    v_lshlrev_b32 v5, 8, v{T0+6}
    v_bfe_u32 v{T0+4}, v0, 3, 1
    v_lshl_add_u32 v5, v{T0+4}, 5, v5
    v_lshl_add_u32 v5, v{T0}, 4, v5
    v_bfe_u32 v{T0+4}, v0, 2, 1
    v_lshl_add_u32 v5, v{T0+4}, 3, v5
    v_bfe_u32 v{T0+4}, v0, 4, 1
    v_lshl_add_u32 v5, v{T0+4}, 2, v5
    v_mov_b32 v{vPA}, s55
    v_mov_b32 v{vPB}, s55
    s_lshl_b32 s41, s38, 13
    s_lshl_b32 s44, s39, 10
    s_add_u32 s41, s41, s44
    s_add_u32 s24, s10, s41
    s_addc_u32 s25, s11, 0
    s_mov_b32 s26, 0x400
    s_waitcnt vmcnt(0)
    """)
    stamp()
    A("s_barrier")
    for j in range(8): A(f"ds_read_b128 v[{Q0+4*j}:{Q0+4*j+3}], v{vKrd[j]}")
    for j in range(8): A(f"v_add_u32 v{vKrd[j]}, s37, v{vKrd[j]}")
    def maxtile(t):
        b = S0 + 16 * t
        for r in range(0, 16, 2): A(f"v_max3_f32 v{vM}, v{b+r}, v{b+r+1}, v{vM}")
    def ptile(t):
        b = S0 + 16 * t
        for r in range(16): A(f"v_fma_f32 v{b+r}, v{b+r}, s45, -v{vM}")
        for r in range(16): A(f"v_exp_f32 v{b+r}, v{b+r}")
        for r in range(16):
            if t == 0 and r == 0: continue
            if t == 0 and r == 1: A(f"v_add_f32 v{vL}, v{b}, v{b+1}")
            else: A(f"v_add_f32 v{vL}, v{vL}, v{b+r}")
        for k in range(8): A(f"v_cvt_pk_bf16_f32 v{b+k}, v{b+2*k}, v{b+2*k+1}")
    for t in range(8):
        A(f"; ---- K row {t}: S^T tile in v[{S0+16*t}:{S0+16*t+15}]")
        if t > 0: A("s_barrier")
        for j in range(8): A(f"ds_read_b128 v[{KF0+4*j}:{KF0+4*j+3}], v{vKrd[j]} offset:{(t % R)*8192}")
        if t > 0:
            A("s_nop 3")
            maxtile(t - 1)
        b = S0 + 16 * t
        for j in range(8):
            c = "0" if j == 0 else f"v[{b}:{b+15}]"
            A(f"s_waitcnt lgkmcnt({7-j})")
            A(f"v_mfma_f32_32x32x16_bf16 v[{b}:{b+15}], v[{KF0+4*j}:{KF0+4*j+3}], v[{Q0+4*j}:{Q0+4*j+3}], {c}")
    stamp()
    A(f"""
    v_lshlrev_b32 v{T0+1}, 4, v0
    v_lshlrev_b32 v{T0+2}, 2, v0
    s_lshl_b32 s41, s36, 11
    v_add_u32 v{vPw}, s41, v{T0+1}
    s_lshl_b32 s41, s36, 8
    v_add_u32 v{vMLw}, s41, v{T0+2}
    """)
    for j in range(1, 4):
        A(f"v_xor_b32 v{vPr[j-1]}, {j << 11}, v{vPw}\nv_xor_b32 v{vMLr[j-1]}, {j << 8}, v{vMLw}")
    A("s_nop 1")
    maxtile(7)
    A(f"""
    v_mov_b32 v{T0}, v{vM}
    s_nop 1
    v_permlane32_swap_b32 v{T0}, v{vM}
    v_max_f32 v{vM}, v{T0}, v{vM}
    ds_write_b32 v{vMLw}, v{vM} offset:{MLBUF}
    s_waitcnt lgkmcnt(0)
    s_barrier
    ds_read_b32 v{T0}, v{vMLr[0]} offset:{MLBUF}
    ds_read_b32 v{T0+1}, v{vMLr[1]} offset:{MLBUF}
    ds_read_b32 v{T0+2}, v{vMLr[2]} offset:{MLBUF}
    s_waitcnt lgkmcnt(0)
    v_max3_f32 v{T0}, v{T0}, v{T0+1}, v{T0+2}
    v_max_f32 v{vM}, v{T0}, v{vM}
    v_mul_f32 v{vM}, s45, v{vM}
    """)
    pdone = [0]
    def pwrite(t):
        b = S0 + 16 * t
        for k2 in range(2):
            A(f"ds_write_b128 v{vPw}, v[{b+4*k2}:{b+4*k2+3}] offset:{PBUF + (t & 1)*8192 + k2*1024}")
    def pread(t):
        for j in range(1, 4):
            for k2 in range(2):
                r = PB[t & 1] + (j - 1) * 8 + k2 * 4
                A(f"ds_read_b128 v[{r}:{r+3}], v{vPr[j-1]} offset:{PBUF + (t & 1)*8192 + k2*1024}")
    def pcompute(k):
        for _ in range(k):
            if pdone[0] < 8: ptile(pdone[0]); pdone[0] += 1
    psched = list(psched) + [8] * 10
    pcompute(psched[0]); pwrite(0)
    A("s_waitcnt lgkmcnt(0)\ns_barrier")
    pread(0)
    pcompute(psched[1]); assert pdone[0] >= 2
    pwrite(1)
    lstate = 0
    for t in range(8):
        slot = (8 + t) % R
        order = [(j, k2) for k2 in range(2) for j in range(4)] if t == 7 else [(j, k2) for j in range(4) for k2 in range(2)]
        def vreads(lst, base):
            for idx, (j, k2) in enumerate(lst):
                r = VF0 + (base + idx) * 4
                for s in range(2):
                    A(f"ds_read_b64_tr_b16 v[{r+2*s}:{r+2*s+1}], v{vVrd[j]} offset:{slot*8192 + k2*4096 + s*2048}")
        def mfma(idx, j, k2):
            r = VF0 + idx * 4
            p = S0 + 16 * t + 4 * k2 if j == 0 else PB[t & 1] + (j - 1) * 8 + k2 * 4
            c = "0" if (t == 0 and idx == 0) else f"v[{O0}:{O0+15}]"
            A(f"v_mfma_f32_32x32x16_bf16 v[{O0}:{O0+15}], v[{r}:{r+3}], v[{p}:{p+3}], {c}")
        if t == 7:
            assert lstate == 2
            A("s_waitcnt vmcnt(0) lgkmcnt(0)\ns_barrier")
            vreads(order[:4], 0)
            A(f"""
            s_mov_b64 exec, 1
            buffer_atomic_and v{vZero}, v{vZero}, s[28:31], s50 offen
            s_mov_b64 exec, -1
            """)
            for idx in range(4):
                A(f"s_waitcnt lgkmcnt({6 - 2*idx})"); mfma(idx, *order[idx])
            A("s_barrier")
            stamp()
            vreads(order[4:], 4)
            for idx in range(4, 8):
                A(f"s_waitcnt lgkmcnt({14 - 2*idx})"); mfma(idx, *order[idx])
            break
        A("s_waitcnt lgkmcnt(0)\ns_barrier")
        vreads(order, 0)
        for idx, (j, k2) in enumerate(order):
            A(f"s_waitcnt lgkmcnt({14 - 2*idx})"); mfma(idx, j, k2)
        pread(t + 1)
        if lstate == 1 and t >= ml_step:
            A(f"""
            s_cmp_lg_u32 s36, 0
            s_cbranch_scc1 L_noml
            ds_read_b32 v{T0}, v{vMLr[0]} offset:{MLBUF + 1024}
            ds_read_b32 v{T0+1}, v{vMLr[1]} offset:{MLBUF + 1024}
            ds_read_b32 v{T0+2}, v{vMLr[2]} offset:{MLBUF + 1024}
            s_waitcnt lgkmcnt(0)
            v_add_f32 v{T0}, v{T0}, v{T0+1}
            v_add_f32 v{vL}, v{vL}, v{T0+2}
            v_add_f32 v{vL}, v{vL}, v{T0}
            s_mov_b32 exec_hi, 0
            buffer_store_dwordx2 v[{vM}:{vL}], v2, s[28:31], s49 offen sc1
            s_mov_b32 exec_hi, -1
            L_noml:
            """)
            lstate = 2
        pcompute(psched[t + 2])
        if t + 2 < 8:
            assert pdone[0] >= t + 3
            pwrite(t + 2)
        if pdone[0] == 8 and lstate == 0:
            A(f"""
            v_mov_b32 v{T0}, v{vL}
            s_nop 1
            v_permlane32_swap_b32 v{T0}, v{vL}
            v_add_f32 v{vL}, v{T0}, v{vL}
            ds_write_b32 v{vMLw}, v{vL} offset:{MLBUF + 1024}
            """)
            lstate = 1
    A("; ---- publish the partial O (one 256-B block per consuming workgroup)\ns_nop 11")
    for s in range(2):
        for k in range(4*s, 4*s + 4): A(f"v_cvt_pk_bf16_f32 v{VF0+k}, v{O0+2*k}, v{O0+2*k+1}")
        A(f"buffer_store_dwordx4 v[{VF0+4*s}:{VF0+4*s+3}], v1, s[28:31], s47 offen offset:{s*128} sc1")
    stamp()
    atom = lambda r: A(f"buffer_atomic_or v{r}, v{vZero}, s[28:31], s50 offen sc0")
    A("s_mov_b64 exec, 1\ns_waitcnt vmcnt(0)")
    stamp()
    atom(vPA)
    A(f"s_sleep {pgap}")
    atom(vPB)
    A("L_poll:")
    for r in (vPA, vPB):
        A(f"""
        s_waitcnt vmcnt(1)
        v_or_b32 v{r}, s55, v{r}
        v_cmp_eq_u32 vcc, s54, v{r}
        s_cbranch_vccnz L_poll_ok
        v_mov_b32 v{r}, s55
        """)
        atom(r)
    A(f"""
    s_sub_u32 s43, s43, 1
    s_cmp_gt_i32 s43, 0
    s_cbranch_scc1 L_poll
    L_poll_ok:
    s_mov_b64 exec, -1
    """)
    stamp()
    X, Y, U = S0, S0 + 8, S0 + 16
    e0, a, b, w0, w1, Ls = S0 + 32, S0 + 36, S0 + 37, S0 + 38, S0 + 40, S0 + 44
    A(f"""
    buffer_load_dwordx2 v[{e0}:{e0+1}], v4, s[28:31], s48 offen sc1
    buffer_load_dwordx2 v[{e0+2}:{e0+3}], v4, s[28:31], s48 offen offset:1024 sc1
    buffer_load_dwordx4 v[{X}:{X+3}], v3, s[28:31], s46 offen sc1
    buffer_load_dwordx4 v[{X+4}:{X+7}], v3, s[28:31], s46 offen offset:1024 sc1
    s_waitcnt vmcnt(2)
    v_max_f32 v{a}, v{e0}, v{e0+2}
    v_max_f32 v{b}, v{e0}, v{e0+2}
    s_waitcnt vmcnt(1)
    v_lshlrev_b32 v{Y}, 16, v{X}
    v_permlane16_swap_b32 v{a}, v{b}
    v_and_b32 v{Y+1}, 0xffff0000, v{X}
    v_max_f32 v{a}, v{a}, v{b}
    v_lshlrev_b32 v{Y+2}, 16, v{X+1}
    v_mov_b32 v{b}, v{a}
    v_and_b32 v{Y+3}, 0xffff0000, v{X+1}
    v_lshlrev_b32 v{Y+4}, 16, v{X+2}
    v_permlane32_swap_b32 v{a}, v{b}
    v_and_b32 v{Y+5}, 0xffff0000, v{X+2}
    v_max_f32 v{a}, v{a}, v{b}
    v_sub_f32 v{w0}, v{e0}, v{a}
    v_sub_f32 v{w1}, v{e0+2}, v{a}
    v_exp_f32 v{w0}, v{w0}
    v_exp_f32 v{w1}, v{w1}
    v_lshlrev_b32 v{Y+6}, 16, v{X+3}
    v_and_b32 v{Y+7}, 0xffff0000, v{X+3}
    v_mul_f32 v{Ls}, v{w0}, v{e0+1}
    v_fmac_f32 v{Ls}, v{w1}, v{e0+3}
    s_waitcnt vmcnt(0)
    v_mov_b32 v{b}, v{Ls}
    """)
    for k in range(4): A(f"v_lshlrev_b32 v{U+2*k}, 16, v{X+4+k}\nv_and_b32 v{U+2*k+1}, 0xffff0000, v{X+4+k}")
    A(f"v_permlane16_swap_b32 v{Ls}, v{b}")
    for k in range(4): A(f"v_pk_mul_f32 v[{Y+2*k}:{Y+2*k+1}], v[{Y+2*k}:{Y+2*k+1}], v[{w0}:{w0+1}] op_sel_hi:[1,0]")
    A(f"v_add_f32 v{Ls}, v{Ls}, v{b}")
    pk = lambda k: A(f"v_pk_fma_f32 v[{Y+2*k}:{Y+2*k+1}], v[{U+2*k}:{U+2*k+1}], v[{w1}:{w1+1}], v[{Y+2*k}:{Y+2*k+1}] op_sel_hi:[1,0,1]")
    pk(0); pk(1)
    A(f"v_mov_b32 v{b}, v{Ls}")
    pk(2); pk(3)
    A(f"""
    v_permlane32_swap_b32 v{Ls}, v{b}
    v_add_f32 v{Ls}, v{Ls}, v{b}
    v_permlane32_swap_b32 v{Y}, v{Y+4}
    v_permlane32_swap_b32 v{Y+1}, v{Y+5}
    v_permlane32_swap_b32 v{Y+2}, v{Y+6}
    v_permlane32_swap_b32 v{Y+3}, v{Y+7}
    v_rcp_f32 v{Ls}, v{Ls}
    v_add_f32 v{Y}, v{Y}, v{Y+4}
    v_add_f32 v{Y+2}, v{Y+2}, v{Y+6}
    v_add_f32 v{Y+1}, v{Y+1}, v{Y+5}
    v_add_f32 v{Y+3}, v{Y+3}, v{Y+7}
    v_permlane16_swap_b32 v{Y}, v{Y+2}
    s_nop 0
    v_permlane16_swap_b32 v{Y+1}, v{Y+3}
    v_add_f32 v{Y}, v{Y}, v{Y+2}
    v_add_f32 v{Y+1}, v{Y+1}, v{Y+3}
    v_mul_f32 v{Y}, v{Y}, v{Ls}
    v_mul_f32 v{Y+1}, v{Y+1}, v{Ls}
    """)
    stamp()
    A(f"v_cvt_pk_bf16_f32 v{Y}, v{Y}, v{Y+1}\nbuffer_store_dword v{Y}, v5, s[24:27], s52 offen")
    if diag:
        A("s_waitcnt vmcnt(0)")
        stamp()
        A("s_getreg_b32 s41, hwreg(HW_REG_XCC_ID)")
        A(f"s_lshl_b32 s43, s2, 2\ns_add_u32 s43, s43, s36\ns_lshl_b32 s43, s43, 6\ns_add_u32 s43, s43, {DIAG_OFF}")
        A("s_waitcnt lgkmcnt(0)\nv_mov_b32 v1, 0")
        for k in range(nst[0]):
            A(f"v_mov_b32 v2, s{64+2*k}\nbuffer_store_dword v2, v1, s[28:31], s43 offen offset:{4*k}")
        A(f"v_mov_b32 v2, s41\nbuffer_store_dword v2, v1, s[28:31], s43 offen offset:60")
    A("L_end:\ns_endpgm")
    return "\n".join([HEADER + f"; @launch grid=(256,1,1) block=(320,1,1) lds={lds}",
           '.amdgcn_target "amdgcn-amd-amdhsa--gfx950"', ".text",
           ".globl standalone__gqa_softmax__sampling_kernel", ".p2align 8",
           ".type standalone__gqa_softmax__sampling_kernel,@function",
           "standalone__gqa_softmax__sampling_kernel:"] + L + [f""".section .rodata,"a"
.p2align 6
.amdhsa_kernel standalone__gqa_softmax__sampling_kernel
  .amdhsa_next_free_vgpr 256
  .amdhsa_next_free_sgpr {96 if diag else 64}
  .amdhsa_accum_offset 256
  .amdhsa_group_segment_fixed_size 0
  .amdhsa_kernarg_size 48
  .amdhsa_user_sgpr_count 2
  .amdhsa_user_sgpr_kernarg_segment_ptr 1
  .amdhsa_system_sgpr_workgroup_id_x 1
  .amdhsa_float_denorm_mode_32 3
.end_amdhsa_kernel
"""])

if __name__ == "__main__":
    cfg = json.loads(sys.argv[1]) if len(sys.argv) > 1 else {}
    print(gen(**cfg))
```

```python
import sys, json, struct, math

HEADER = """; GQA decode attention, B=8 Hq=32 Hkv=4 Sq=4 Sk=8192 D=128, bf16 in / bf16 out.
;
"""

def f2u(x): return struct.unpack("<I", struct.pack("<f", x))[0]

def gen(spin=1 << 21, W=11, bq=10, t1=4, t2=6, pgap=4, psched=(1, 1, 2, 2, 2), ml_step=5,
        perm=(4, 5, 7, 0, 1, 2, 3, 6), diag=False, near=None):
    L = []
    def A(s):
        for ln in s.split("\n"):
            ln = ln.strip()
            if ln: L.append(("" if ln.endswith(":") else "    ") + ln)
    R = 4
    PBUF, MLBUF, RING0 = 0, 16384, 20480
    lds = RING0 + 4 * R * 8192
    C = math.log2(math.e) / math.sqrt(128.0)
    ML_OFF, DATA_OFF, DIAG_OFF = 0x10000, 0x80000, 0x800000
    WS_BYTES = 0x900000 if diag else DATA_OFF + 0x200000
    if near is not None:
        ML_OFF, DATA_OFF = 0x10000, 0x400000
        WS_BYTES = 0x900000 if diag else 0x800000
    vKsrc = [1, 2, 3, 4]; vVsrc = 5; vKrd = list(range(6, 14)); vVrd = [14, 15, 16, 17]
    vM, vL = 18, 19
    Q0, KF0, S0, VF0, T0 = 20, 52, 84, 212, 244
    O0 = 20; PB = [36, 60]
    vPw, vPr, vMLw, vMLr = 6, [7, 8, 9], 10, [11, 12, 13]
    vZero, vPA, vPB = T0 + 8, T0 + 9, T0 + 10
    nst = [0]
    def stamp():
        if diag and nst[0] < 15:
            A(f"s_memrealtime s[{64+2*nst[0]}:{65+2*nst[0]}]"); nst[0] += 1
    dec = []; k = 0; first = True
    while k < 8:
        n = 1
        while k + n < 8 and perm[k + n] == perm[k] + n: n += 1
        dst = "s40" if first else "s41"
        dec.append(f"s_bfe_u32 {dst}, s2, {hex((n << 16) | k)}")
        if perm[k]: dec.append(f"s_lshl_b32 {dst}, {dst}, {perm[k]}")
        if not first: dec.append("s_or_b32 s40, s40, s41")
        first = False; k += n
    stamp()
    A(f"""
    s_load_dwordx8 s[4:11], s[0:1], 0
    s_load_dwordx2 s[28:29], s[0:1], 40
    s_cmp_ge_u32 s2, 0x100
    s_cbranch_scc1 L_end
    v_lshrrev_b32 v1, 6, v0
    v_and_b32 v0, 63, v0
    v_readfirstlane_b32 s36, v1
    {chr(10).join(dec)}
    s_lshr_b32 s38, s40, 3
    s_and_b32 s39, s40, 7
    s_lshl_b32 s40, s40, 18
    v_lshrrev_b32 v6, 4, v0
    v_and_b32 v7, 15, v0
    v_xor_b32 v8, v7, v6
    v_lshlrev_b32 v8, 4, v8
    v_lshl_add_u32 v1, v6, 8, v8
    v_xor_b32 v2, 64, v1
    v_xor_b32 v3, 0x80, v1
    v_xor_b32 v4, 0xc0, v1
    s_mov_b32 s18, 0x40000
    s_mov_b32 s19, 0x20000
    s_lshl_b32 s37, s36, 15
    s_add_u32 s37, s37, {RING0}
    s_lshl_b32 s44, s36, 13
    s_mov_b32 m0, s37
    s_add_u32 s43, s44, 0x1000
    s_cmp_eq_u32 s36, 4
    s_waitcnt lgkmcnt(0)
    s_cbranch_scc1 L_loader
    s_add_u32 s16, s6, s40
    s_addc_u32 s17, s7, 0
    """)
    for i in range(4): A(f"buffer_load_dwordx4 v{vKsrc[i]}, s[16:19], s44 offen offset:{i*1024} nt lds")
    A("s_add_u32 m0, s37, 4096\ns_lshl_b32 s41, s38, 13")
    for i in range(4): A(f"buffer_load_dwordx4 v{vKsrc[i]}, s[16:19], s43 offen offset:{i*1024} nt lds")
    A(f"""
    s_add_u32 s24, s4, s41
    s_addc_u32 s25, s5, 0
    s_mov_b32 s26, 0x2000
    s_mov_b32 s27, 0x20000
    s_and_b32 s41, s36, 1
    s_lshl_b32 s41, s41, 7
    v_xor_b32 v9, s41, v1
    v_xor_b32 v10, s41, v2
    s_lshl_b32 s41, s36, 11
    s_mov_b32 m0, s41
    s_mov_b32 s30, {hex(WS_BYTES)}
    s_mov_b32 s31, 0x20000
    buffer_load_dwordx4 v9, s[24:27], s41 offen lds
    buffer_load_dwordx4 v10, s[24:27], s41 offen offset:1024 lds
    s_branch L_compute
    L_loader:
    s_setprio 3
    s_add_u32 s16, s6, s40
    s_addc_u32 s17, s7, 0
    s_add_u32 s20, s8, s40
    s_addc_u32 s21, s9, 0
    s_mov_b32 s22, 0x40000
    s_mov_b32 s23, 0x20000
    v_lshlrev_b32 v8, 2, v6
    v_xor_b32 v8, v7, v8
    v_lshlrev_b32 v8, 4, v8
    v_lshl_add_u32 v{vVsrc}, v6, 8, v8
    """)
    groups = []
    for n in range(1, 16):
        if n == 15: groups += [(n, w, h) for h in range(2) for w in range(4)]
        else: groups += [(n, w, h) for w in range(4) for h in range(2)]
    NG = len(groups)
    rowname = lambda n: f"K row {n}" if n < 8 else f"V row {n-8}"
    ev = [(8 * n, n, rowname(n) + " landed") for n in range(1, 15)] + [(8 * 14 + 4, 15, "first half of V row 7 landed"), (8 * 15, 15, "V row 7 landed")]
    extra = {}
    extra.setdefault(bq, []).append("Q and K row 0 landed")
    k7 = 8 * 7 + W - 1
    extra.setdefault(k7 + t1, []).append("row max exchange"); extra.setdefault(k7 + t2, []).append("first P tile")
    assert t1 <= t2 < 8 and bq < 8 + W - 1
    freed = R; nbar = 0
    for gi in range(NG):
        if gi >= W - 1:
            landed = gi - (W - 1)
            A(f"s_waitcnt vmcnt({4*(W-1)})")
            while ev and ev[0][0] <= landed:
                A(f"s_barrier ; {ev[0][2]}"); nbar += 1
                freed = ev[0][1] + R
                ev.pop(0)
        for nm in extra.pop(gi, []):
            A(f"s_barrier ; {nm}"); nbar += 1
        n, w, h = groups[gi]
        assert n < freed, (gi, n, freed)
        kind, t = ("k", n) if n < 8 else ("v", n - 8)
        srd = "s[16:19]" if kind == "k" else "s[20:23]"
        A(f"s_mov_b32 m0, {RING0 + w*R*8192 + (n % R)*8192 + h*4096}")
        A(f"s_mov_b32 s44, {t*32768 + w*8192 + h*4096}")
        for i in range(4):
            va = vKsrc[i] if kind == "k" else vVsrc
            A(f"buffer_load_dwordx4 v{va}, {srd}, s44 offen offset:{i*1024} nt lds")
    assert not extra
    for need, n, nm in ev:
        A(f"s_waitcnt vmcnt({4*(NG - need)})\ns_barrier ; {nm}"); nbar += 1
    assert nbar == 19, nbar
    A(f"""
    s_endpgm
    L_compute:
    v_lshrrev_b32 v{T0}, 5, v0
    v_and_b32 v{T0+1}, 31, v0
    v_xor_b32 v{T0+2}, v{T0}, v7
    v_lshlrev_b32 v{T0+2}, 4, v{T0+2}
    v_bfe_u32 v{T0+3}, v0, 2, 2
    v_lshl_add_u32 v{T0+4}, v{T0}, 2, v{T0+3}
    v_xor_b32 v{T0+5}, s36, v{T0+3}
    v_lshlrev_b32 v{T0+5}, 6, v{T0+5}
    v_lshl_add_u32 v{T0+5}, v{T0+4}, 8, v{T0+5}
    v_and_b32 v{T0+6}, 1, v6
    v_lshl_add_u32 v{T0+5}, v{T0+6}, 5, v{T0+5}
    v_and_b32 v{T0+6}, 3, v0
    v_lshl_add_u32 v{T0+5}, v{T0+6}, 3, v{T0+5}
    v_add_u32 v{vVrd[0]}, s37, v{T0+5}
    """)
    for j in range(1, 4):
        A(f"""
        s_xor_b32 s41, s36, {j}
        s_lshl_b32 s41, s41, 15
        s_add_u32 s41, s41, {RING0}
        v_add_u32 v{vVrd[j]}, s41, v{T0+5}
        """)
    A(f"v_lshl_add_u32 v{vKrd[0]}, v{T0+1}, 8, v{T0+2}")
    for j in range(1, 8): A(f"v_xor_b32 v{vKrd[j]}, {j*32}, v{vKrd[0]}")
    A(f"""
    s_mov_b32 s45, {hex(f2u(C))}
    v_mov_b32 v{vM}, 0xff800000
    v_mov_b32 v{vZero}, 0
    s_lshl_b32 s42, s38, 2
    s_add_u32 s42, s42, s36
    """)
    if near is None: A(f"""
    s_lshl_b32 s50, s42, 7
    s_lshl_b32 s48, s38, 11
    s_lshl_b32 s41, s39, 8
    s_add_u32 s49, s48, s41
    s_add_u32 s49, s49, {hex(ML_OFF)}
    s_lshl_b32 s41, s39, 5
    s_add_u32 s48, s48, s41
    s_add_u32 s48, s48, {hex(ML_OFF)}
    s_lshl_b32 s46, s42, 14
    s_lshl_b32 s41, s39, 8
    s_add_u32 s47, s46, s41
    s_add_u32 s47, s47, {hex(DATA_OFF)}
    s_lshl_b32 s41, s39, 11
    s_add_u32 s46, s46, s41
    s_add_u32 s46, s46, {hex(DATA_OFF)}
    """)
    else: A(f"""
    s_bfe_u32 s56, s2, 0x10002
    s_xor_b32 s56, s56, {near}
    s_lshl_b32 s56, s56, 13
    s_lshr_b32 s41, s42, 6
    s_lshl_b32 s41, s41, 14
    s_and_b32 s50, s42, 63
    s_lshl_b32 s50, s50, 7
    s_add_u32 s50, s50, s41
    s_add_u32 s50, s50, s56
    s_lshr_b32 s41, s38, 2
    s_lshl_b32 s41, s41, 14
    s_and_b32 s48, s38, 3
    s_lshl_b32 s48, s48, 11
    s_add_u32 s48, s48, s41
    s_add_u32 s48, s48, s56
    s_add_u32 s48, s48, {hex(ML_OFF)}
    s_lshl_b32 s41, s39, 8
    s_add_u32 s49, s48, s41
    s_lshl_b32 s41, s39, 5
    s_add_u32 s48, s48, s41
    s_lshl_b32 s46, s42, 15
    s_bfe_u32 s41, s42, 0x10006
    s_lshl_b32 s41, s41, 13
    s_xor_b32 s41, s41, s56
    s_add_u32 s46, s46, s41
    s_add_u32 s46, s46, {hex(DATA_OFF)}
    s_lshl_b32 s41, s39, 8
    s_add_u32 s47, s46, s41
    s_and_b32 s41, s39, 3
    s_lshl_b32 s41, s41, 11
    s_add_u32 s46, s46, s41
    s_lshr_b32 s41, s39, 2
    s_lshl_b32 s41, s41, 14
    s_add_u32 s46, s46, s41
    """)
    A(f"""
    s_lshl_b32 s52, s36, 6
    s_lshl_b32 s55, 1, s39
    s_movk_i32 s54, 0xff
    s_mov_b32 s43, {hex(spin)}
    v_lshlrev_b32 v2, 3, v0
    v_bfe_u32 v{T0+4}, v0, 2, {3 if near is None else 2}
    v_lshlrev_b32 v1, 11, v{T0+4}
    {"" if near is None else f"v_bfe_u32 v{T0+4}, v0, 4, 1; v_lshl_add_u32 v1, v{T0+4}, 14, v1".replace("; ", chr(10))}
    v_lshl_add_u32 v1, v{T0}, 6, v1
    v_lshl_add_u32 v1, v{T0+6}, 4, v1
    v_lshlrev_b32 v3, 4, v0
    v_lshrrev_b32 v4, 4, v0
    v_lshlrev_b32 v4, 8, v4
    v_lshl_add_u32 v4, v{T0+6}, 3, v4
    v_lshlrev_b32 v5, 8, v{T0+6}
    v_bfe_u32 v{T0+4}, v0, 3, 1
    v_lshl_add_u32 v5, v{T0+4}, 5, v5
    v_lshl_add_u32 v5, v{T0}, 4, v5
    v_bfe_u32 v{T0+4}, v0, 2, 1
    v_lshl_add_u32 v5, v{T0+4}, 3, v5
    v_bfe_u32 v{T0+4}, v0, 4, 1
    v_lshl_add_u32 v5, v{T0+4}, 2, v5
    v_mov_b32 v{vPA}, s55
    v_mov_b32 v{vPB}, s55
    s_lshl_b32 s41, s38, 13
    s_lshl_b32 s44, s39, 10
    s_add_u32 s41, s41, s44
    s_add_u32 s24, s10, s41
    s_addc_u32 s25, s11, 0
    s_mov_b32 s26, 0x400
    s_waitcnt vmcnt(0)
    """)
    stamp()
    A("s_barrier")
    for j in range(8): A(f"ds_read_b128 v[{Q0+4*j}:{Q0+4*j+3}], v{vKrd[j]}")
    for j in range(8): A(f"v_add_u32 v{vKrd[j]}, s37, v{vKrd[j]}")
    def maxtile(t):
        b = S0 + 16 * t
        for r in range(0, 16, 2): A(f"v_max3_f32 v{vM}, v{b+r}, v{b+r+1}, v{vM}")
    def ptile(t):
        b = S0 + 16 * t
        for r in range(16): A(f"v_fma_f32 v{b+r}, v{b+r}, s45, -v{vM}")
        for r in range(16): A(f"v_exp_f32 v{b+r}, v{b+r}")
        for r in range(16):
            if t == 0 and r == 0: continue
            if t == 0 and r == 1: A(f"v_add_f32 v{vL}, v{b}, v{b+1}")
            else: A(f"v_add_f32 v{vL}, v{vL}, v{b+r}")
        for k in range(8): A(f"v_cvt_pk_bf16_f32 v{b+k}, v{b+2*k}, v{b+2*k+1}")
    for t in range(8):
        A(f"; ---- K row {t}: S^T tile in v[{S0+16*t}:{S0+16*t+15}]")
        if t > 0: A("s_barrier")
        for j in range(8): A(f"ds_read_b128 v[{KF0+4*j}:{KF0+4*j+3}], v{vKrd[j]} offset:{(t % R)*8192}")
        if t > 0:
            A("s_nop 3")
            maxtile(t - 1)
        b = S0 + 16 * t
        for j in range(8):
            c = "0" if j == 0 else f"v[{b}:{b+15}]"
            A(f"s_waitcnt lgkmcnt({7-j})")
            A(f"v_mfma_f32_32x32x16_bf16 v[{b}:{b+15}], v[{KF0+4*j}:{KF0+4*j+3}], v[{Q0+4*j}:{Q0+4*j+3}], {c}")
    stamp()
    A(f"""
    v_lshlrev_b32 v{T0+1}, 4, v0
    v_lshlrev_b32 v{T0+2}, 2, v0
    s_lshl_b32 s41, s36, 11
    v_add_u32 v{vPw}, s41, v{T0+1}
    s_lshl_b32 s41, s36, 8
    v_add_u32 v{vMLw}, s41, v{T0+2}
    """)
    for j in range(1, 4):
        A(f"v_xor_b32 v{vPr[j-1]}, {j << 11}, v{vPw}\nv_xor_b32 v{vMLr[j-1]}, {j << 8}, v{vMLw}")
    A("s_nop 1")
    maxtile(7)
    A(f"""
    v_mov_b32 v{T0}, v{vM}
    s_nop 1
    v_permlane32_swap_b32 v{T0}, v{vM}
    v_max_f32 v{vM}, v{T0}, v{vM}
    ds_write_b32 v{vMLw}, v{vM} offset:{MLBUF}
    s_waitcnt lgkmcnt(0)
    s_barrier
    ds_read_b32 v{T0}, v{vMLr[0]} offset:{MLBUF}
    ds_read_b32 v{T0+1}, v{vMLr[1]} offset:{MLBUF}
    ds_read_b32 v{T0+2}, v{vMLr[2]} offset:{MLBUF}
    s_waitcnt lgkmcnt(0)
    v_max3_f32 v{T0}, v{T0}, v{T0+1}, v{T0+2}
    v_max_f32 v{vM}, v{T0}, v{vM}
    v_mul_f32 v{vM}, s45, v{vM}
    """)
    pdone = [0]
    def pwrite(t):
        b = S0 + 16 * t
        for k2 in range(2):
            A(f"ds_write_b128 v{vPw}, v[{b+4*k2}:{b+4*k2+3}] offset:{PBUF + (t & 1)*8192 + k2*1024}")
    def pread(t):
        for j in range(1, 4):
            for k2 in range(2):
                r = PB[t & 1] + (j - 1) * 8 + k2 * 4
                A(f"ds_read_b128 v[{r}:{r+3}], v{vPr[j-1]} offset:{PBUF + (t & 1)*8192 + k2*1024}")
    def pcompute(k):
        for _ in range(k):
            if pdone[0] < 8: ptile(pdone[0]); pdone[0] += 1
    psched = list(psched) + [8] * 10
    pcompute(psched[0]); pwrite(0)
    A("s_waitcnt lgkmcnt(0)\ns_barrier")
    pread(0)
    pcompute(psched[1]); assert pdone[0] >= 2
    pwrite(1)
    lstate = 0
    for t in range(8):
        slot = (8 + t) % R
        order = [(j, k2) for k2 in range(2) for j in range(4)] if t == 7 else [(j, k2) for j in range(4) for k2 in range(2)]
        def vreads(lst, base):
            for idx, (j, k2) in enumerate(lst):
                r = VF0 + (base + idx) * 4
                for s in range(2):
                    A(f"ds_read_b64_tr_b16 v[{r+2*s}:{r+2*s+1}], v{vVrd[j]} offset:{slot*8192 + k2*4096 + s*2048}")
        def mfma(idx, j, k2):
            r = VF0 + idx * 4
            p = S0 + 16 * t + 4 * k2 if j == 0 else PB[t & 1] + (j - 1) * 8 + k2 * 4
            c = "0" if (t == 0 and idx == 0) else f"v[{O0}:{O0+15}]"
            A(f"v_mfma_f32_32x32x16_bf16 v[{O0}:{O0+15}], v[{r}:{r+3}], v[{p}:{p+3}], {c}")
        if t == 7:
            assert lstate == 2
            A("s_waitcnt vmcnt(0) lgkmcnt(0)\ns_barrier")
            vreads(order[:4], 0)
            A(f"""
            s_mov_b64 exec, 1
            buffer_atomic_and v{vZero}, v{vZero}, s[28:31], s50 offen
            s_mov_b64 exec, -1
            """)
            for idx in range(4):
                A(f"s_waitcnt lgkmcnt({6 - 2*idx})"); mfma(idx, *order[idx])
            A("s_barrier")
            stamp()
            vreads(order[4:], 4)
            for idx in range(4, 8):
                A(f"s_waitcnt lgkmcnt({14 - 2*idx})"); mfma(idx, *order[idx])
            break
        A("s_waitcnt lgkmcnt(0)\ns_barrier")
        vreads(order, 0)
        for idx, (j, k2) in enumerate(order):
            A(f"s_waitcnt lgkmcnt({14 - 2*idx})"); mfma(idx, j, k2)
        pread(t + 1)
        if lstate == 1 and t >= ml_step:
            A(f"""
            s_cmp_lg_u32 s36, 0
            s_cbranch_scc1 L_noml
            ds_read_b32 v{T0}, v{vMLr[0]} offset:{MLBUF + 1024}
            ds_read_b32 v{T0+1}, v{vMLr[1]} offset:{MLBUF + 1024}
            ds_read_b32 v{T0+2}, v{vMLr[2]} offset:{MLBUF + 1024}
            s_waitcnt lgkmcnt(0)
            v_add_f32 v{T0}, v{T0}, v{T0+1}
            v_add_f32 v{vL}, v{vL}, v{T0+2}
            v_add_f32 v{vL}, v{vL}, v{T0}
            s_mov_b32 exec_hi, 0
            buffer_store_dwordx2 v[{vM}:{vL}], v2, s[28:31], s49 offen sc1
            s_mov_b32 exec_hi, -1
            L_noml:
            """)
            lstate = 2
        pcompute(psched[t + 2])
        if t + 2 < 8:
            assert pdone[0] >= t + 3
            pwrite(t + 2)
        if pdone[0] == 8 and lstate == 0:
            A(f"""
            v_mov_b32 v{T0}, v{vL}
            s_nop 1
            v_permlane32_swap_b32 v{T0}, v{vL}
            v_add_f32 v{vL}, v{T0}, v{vL}
            ds_write_b32 v{vMLw}, v{vL} offset:{MLBUF + 1024}
            """)
            lstate = 1
    A("; ---- publish the partial O (one 256-B block per consuming workgroup)\ns_nop 11")
    for s in range(2):
        for k in range(4*s, 4*s + 4): A(f"v_cvt_pk_bf16_f32 v{VF0+k}, v{O0+2*k}, v{O0+2*k+1}")
        A(f"buffer_store_dwordx4 v[{VF0+4*s}:{VF0+4*s+3}], v1, s[28:31], s47 offen offset:{s*128} sc1")
    stamp()
    atom = lambda r: A(f"buffer_atomic_or v{r}, v{vZero}, s[28:31], s50 offen sc0")
    A("s_mov_b64 exec, 1\ns_waitcnt vmcnt(0)")
    stamp()
    atom(vPA)
    A(f"s_sleep {pgap}")
    atom(vPB)
    A("L_poll:")
    for r in (vPA, vPB):
        A(f"""
        s_waitcnt vmcnt(1)
        v_or_b32 v{r}, s55, v{r}
        v_cmp_eq_u32 vcc, s54, v{r}
        s_cbranch_vccnz L_poll_ok
        v_mov_b32 v{r}, s55
        """)
        atom(r)
    A(f"""
    s_sub_u32 s43, s43, 1
    s_cmp_gt_i32 s43, 0
    s_cbranch_scc1 L_poll
    L_poll_ok:
    s_mov_b64 exec, -1
    """)
    stamp()
    X, Y, U = S0, S0 + 8, S0 + 16
    e0, a, b, w0, w1, Ls = S0 + 32, S0 + 36, S0 + 37, S0 + 38, S0 + 40, S0 + 44
    A(f"""
    buffer_load_dwordx2 v[{e0}:{e0+1}], v4, s[28:31], s48 offen sc1
    buffer_load_dwordx2 v[{e0+2}:{e0+3}], v4, s[28:31], s48 offen offset:1024 sc1
    buffer_load_dwordx4 v[{X}:{X+3}], v3, s[28:31], s46 offen sc1
    buffer_load_dwordx4 v[{X+4}:{X+7}], v3, s[28:31], s46 offen offset:1024 sc1
    s_waitcnt vmcnt(2)
    v_max_f32 v{a}, v{e0}, v{e0+2}
    v_max_f32 v{b}, v{e0}, v{e0+2}
    s_waitcnt vmcnt(1)
    v_lshlrev_b32 v{Y}, 16, v{X}
    v_permlane16_swap_b32 v{a}, v{b}
    v_and_b32 v{Y+1}, 0xffff0000, v{X}
    v_max_f32 v{a}, v{a}, v{b}
    v_lshlrev_b32 v{Y+2}, 16, v{X+1}
    v_mov_b32 v{b}, v{a}
    v_and_b32 v{Y+3}, 0xffff0000, v{X+1}
    v_lshlrev_b32 v{Y+4}, 16, v{X+2}
    v_permlane32_swap_b32 v{a}, v{b}
    v_and_b32 v{Y+5}, 0xffff0000, v{X+2}
    v_max_f32 v{a}, v{a}, v{b}
    v_sub_f32 v{w0}, v{e0}, v{a}
    v_sub_f32 v{w1}, v{e0+2}, v{a}
    v_exp_f32 v{w0}, v{w0}
    v_exp_f32 v{w1}, v{w1}
    v_lshlrev_b32 v{Y+6}, 16, v{X+3}
    v_and_b32 v{Y+7}, 0xffff0000, v{X+3}
    v_mul_f32 v{Ls}, v{w0}, v{e0+1}
    v_fmac_f32 v{Ls}, v{w1}, v{e0+3}
    s_waitcnt vmcnt(0)
    v_mov_b32 v{b}, v{Ls}
    """)
    for k in range(4): A(f"v_lshlrev_b32 v{U+2*k}, 16, v{X+4+k}\nv_and_b32 v{U+2*k+1}, 0xffff0000, v{X+4+k}")
    A(f"v_permlane16_swap_b32 v{Ls}, v{b}")
    for k in range(4): A(f"v_pk_mul_f32 v[{Y+2*k}:{Y+2*k+1}], v[{Y+2*k}:{Y+2*k+1}], v[{w0}:{w0+1}] op_sel_hi:[1,0]")
    A(f"v_add_f32 v{Ls}, v{Ls}, v{b}")
    pk = lambda k: A(f"v_pk_fma_f32 v[{Y+2*k}:{Y+2*k+1}], v[{U+2*k}:{U+2*k+1}], v[{w1}:{w1+1}], v[{Y+2*k}:{Y+2*k+1}] op_sel_hi:[1,0,1]")
    pk(0); pk(1)
    A(f"v_mov_b32 v{b}, v{Ls}")
    pk(2); pk(3)
    A(f"""
    v_permlane32_swap_b32 v{Ls}, v{b}
    v_add_f32 v{Ls}, v{Ls}, v{b}
    v_permlane32_swap_b32 v{Y}, v{Y+4}
    v_permlane32_swap_b32 v{Y+1}, v{Y+5}
    v_permlane32_swap_b32 v{Y+2}, v{Y+6}
    v_permlane32_swap_b32 v{Y+3}, v{Y+7}
    v_rcp_f32 v{Ls}, v{Ls}
    v_add_f32 v{Y}, v{Y}, v{Y+4}
    v_add_f32 v{Y+2}, v{Y+2}, v{Y+6}
    v_add_f32 v{Y+1}, v{Y+1}, v{Y+5}
    v_add_f32 v{Y+3}, v{Y+3}, v{Y+7}
    v_permlane16_swap_b32 v{Y}, v{Y+2}
    s_nop 0
    v_permlane16_swap_b32 v{Y+1}, v{Y+3}
    v_add_f32 v{Y}, v{Y}, v{Y+2}
    v_add_f32 v{Y+1}, v{Y+1}, v{Y+3}
    v_mul_f32 v{Y}, v{Y}, v{Ls}
    v_mul_f32 v{Y+1}, v{Y+1}, v{Ls}
    """)
    stamp()
    A(f"v_cvt_pk_bf16_f32 v{Y}, v{Y}, v{Y+1}\nbuffer_store_dword v{Y}, v5, s[24:27], s52 offen")
    if diag:
        A("s_waitcnt vmcnt(0)")
        stamp()
        A("s_getreg_b32 s41, hwreg(HW_REG_XCC_ID)")
        A(f"s_lshl_b32 s43, s2, 2\ns_add_u32 s43, s43, s36\ns_lshl_b32 s43, s43, 6\ns_add_u32 s43, s43, {DIAG_OFF}")
        A("s_waitcnt lgkmcnt(0)\nv_mov_b32 v1, 0")
        for k in range(nst[0]):
            A(f"v_mov_b32 v2, s{64+2*k}\nbuffer_store_dword v2, v1, s[28:31], s43 offen offset:{4*k}")
        A(f"v_mov_b32 v2, s41\nbuffer_store_dword v2, v1, s[28:31], s43 offen offset:60")
    A("L_end:\ns_endpgm")
    return "\n".join([HEADER + f"; @launch grid=(256,1,1) block=(320,1,1) lds={lds}",
           '.amdgcn_target "amdgcn-amd-amdhsa--gfx950"', ".text",
           ".globl standalone__gqa_softmax__sampling_kernel", ".p2align 8",
           ".type standalone__gqa_softmax__sampling_kernel,@function",
           "standalone__gqa_softmax__sampling_kernel:"] + L + [f""".section .rodata,"a"
.p2align 6
.amdhsa_kernel standalone__gqa_softmax__sampling_kernel
  .amdhsa_next_free_vgpr 256
  .amdhsa_next_free_sgpr {96 if diag else 64}
  .amdhsa_accum_offset 256
  .amdhsa_group_segment_fixed_size 0
  .amdhsa_kernarg_size 48
  .amdhsa_user_sgpr_count 2
  .amdhsa_user_sgpr_kernarg_segment_ptr 1
  .amdhsa_system_sgpr_workgroup_id_x 1
  .amdhsa_float_denorm_mode_32 3
.end_amdhsa_kernel
"""])

if __name__ == "__main__":
    cfg = json.loads(sys.argv[1]) if len(sys.argv) > 1 else {}
    print(gen(**cfg))
```

```python
import sys, json, struct, math

HEADER = """; GQA decode attention, B=8 Hq=32 Hkv=4 Sq=4 Sk=8192 D=128, bf16 in / bf16 out.
;
"""

def f2u(x): return struct.unpack("<I", struct.pack("<f", x))[0]

def gen(spin=1 << 21, W=11, bq=10, t1=4, t2=6, pgap=4, psched=(1, 1, 2, 2, 2), ml_step=5,
        perm=(4, 5, 7, 0, 1, 2, 3, 6), diag=False, near=None, mimic=True):
    L = []
    def A(s):
        for ln in s.split("\n"):
            ln = ln.strip()
            if ln: L.append(("" if ln.endswith(":") else "    ") + ln)
    R = 4
    PBUF, MLBUF, RING0 = 0, 16384, 20480
    lds = RING0 + 4 * R * 8192
    C = math.log2(math.e) / math.sqrt(128.0)
    if mimic: C = math.log2(math.e)
    SC = 128.0 ** -0.5
    ML_OFF, DATA_OFF, DIAG_OFF = 0x10000, 0x80000, 0x800000
    WS_BYTES = 0x900000 if diag else DATA_OFF + 0x200000
    if near is not None:
        ML_OFF, DATA_OFF = 0x10000, 0x400000
        WS_BYTES = 0x900000 if diag else 0x800000
    vKsrc = [1, 2, 3, 4]; vVsrc = 5; vKrd = list(range(6, 14)); vVrd = [14, 15, 16, 17]
    vM, vL = 18, 19
    Q0, KF0, S0, VF0, T0 = 20, 52, 84, 212, 244
    O0 = 20; PB = [36, 60]
    vPw, vPr, vMLw, vMLr = 6, [7, 8, 9], 10, [11, 12, 13]
    vZero, vPA, vPB = T0 + 8, T0 + 9, T0 + 10
    nst = [0]
    def stamp():
        if diag and nst[0] < 15:
            A(f"s_memrealtime s[{64+2*nst[0]}:{65+2*nst[0]}]"); nst[0] += 1
    dec = []; k = 0; first = True
    while k < 8:
        n = 1
        while k + n < 8 and perm[k + n] == perm[k] + n: n += 1
        dst = "s40" if first else "s41"
        dec.append(f"s_bfe_u32 {dst}, s2, {hex((n << 16) | k)}")
        if perm[k]: dec.append(f"s_lshl_b32 {dst}, {dst}, {perm[k]}")
        if not first: dec.append("s_or_b32 s40, s40, s41")
        first = False; k += n
    stamp()
    A(f"""
    s_load_dwordx8 s[4:11], s[0:1], 0
    s_load_dwordx2 s[28:29], s[0:1], 40
    s_cmp_ge_u32 s2, 0x100
    s_cbranch_scc1 L_end
    v_lshrrev_b32 v1, 6, v0
    v_and_b32 v0, 63, v0
    v_readfirstlane_b32 s36, v1
    {chr(10).join(dec)}
    s_lshr_b32 s38, s40, 3
    s_and_b32 s39, s40, 7
    s_lshl_b32 s40, s40, 18
    v_lshrrev_b32 v6, 4, v0
    v_and_b32 v7, 15, v0
    v_xor_b32 v8, v7, v6
    v_lshlrev_b32 v8, 4, v8
    v_lshl_add_u32 v1, v6, 8, v8
    v_xor_b32 v2, 64, v1
    v_xor_b32 v3, 0x80, v1
    v_xor_b32 v4, 0xc0, v1
    s_mov_b32 s18, 0x40000
    s_mov_b32 s19, 0x20000
    s_lshl_b32 s37, s36, 15
    s_add_u32 s37, s37, {RING0}
    s_lshl_b32 s44, s36, 13
    s_mov_b32 m0, s37
    s_add_u32 s43, s44, 0x1000
    s_cmp_eq_u32 s36, 4
    s_waitcnt lgkmcnt(0)
    s_cbranch_scc1 L_loader
    s_add_u32 s16, s6, s40
    s_addc_u32 s17, s7, 0
    """)
    for i in range(4): A(f"buffer_load_dwordx4 v{vKsrc[i]}, s[16:19], s44 offen offset:{i*1024} nt lds")
    A("s_add_u32 m0, s37, 4096\ns_lshl_b32 s41, s38, 13")
    for i in range(4): A(f"buffer_load_dwordx4 v{vKsrc[i]}, s[16:19], s43 offen offset:{i*1024} nt lds")
    A(f"""
    s_add_u32 s24, s4, s41
    s_addc_u32 s25, s5, 0
    s_mov_b32 s26, 0x2000
    s_mov_b32 s27, 0x20000
    s_and_b32 s41, s36, 1
    s_lshl_b32 s41, s41, 7
    v_xor_b32 v9, s41, v1
    v_xor_b32 v10, s41, v2
    s_lshl_b32 s41, s36, 11
    s_mov_b32 m0, s41
    s_mov_b32 s30, {hex(WS_BYTES)}
    s_mov_b32 s31, 0x20000
    buffer_load_dwordx4 v9, s[24:27], s41 offen lds
    buffer_load_dwordx4 v10, s[24:27], s41 offen offset:1024 lds
    s_branch L_compute
    L_loader:
    s_setprio 3
    s_add_u32 s16, s6, s40
    s_addc_u32 s17, s7, 0
    s_add_u32 s20, s8, s40
    s_addc_u32 s21, s9, 0
    s_mov_b32 s22, 0x40000
    s_mov_b32 s23, 0x20000
    v_lshlrev_b32 v8, 2, v6
    v_xor_b32 v8, v7, v8
    v_lshlrev_b32 v8, 4, v8
    v_lshl_add_u32 v{vVsrc}, v6, 8, v8
    """)
    groups = []
    for n in range(1, 16):
        if n == 15: groups += [(n, w, h) for h in range(2) for w in range(4)]
        else: groups += [(n, w, h) for w in range(4) for h in range(2)]
    NG = len(groups)
    rowname = lambda n: f"K row {n}" if n < 8 else f"V row {n-8}"
    ev = [(8 * n, n, rowname(n) + " landed") for n in range(1, 15)] + [(8 * 14 + 4, 15, "first half of V row 7 landed"), (8 * 15, 15, "V row 7 landed")]
    extra = {}
    extra.setdefault(bq, []).append("Q and K row 0 landed")
    k7 = 8 * 7 + W - 1
    extra.setdefault(k7 + t1, []).append("row max exchange"); extra.setdefault(k7 + t2, []).append("first P tile")
    assert t1 <= t2 < 8 and bq < 8 + W - 1
    freed = R; nbar = 0
    for gi in range(NG):
        if gi >= W - 1:
            landed = gi - (W - 1)
            A(f"s_waitcnt vmcnt({4*(W-1)})")
            while ev and ev[0][0] <= landed:
                A(f"s_barrier ; {ev[0][2]}"); nbar += 1
                freed = ev[0][1] + R
                ev.pop(0)
        for nm in extra.pop(gi, []):
            A(f"s_barrier ; {nm}"); nbar += 1
        n, w, h = groups[gi]
        assert n < freed, (gi, n, freed)
        kind, t = ("k", n) if n < 8 else ("v", n - 8)
        srd = "s[16:19]" if kind == "k" else "s[20:23]"
        A(f"s_mov_b32 m0, {RING0 + w*R*8192 + (n % R)*8192 + h*4096}")
        A(f"s_mov_b32 s44, {t*32768 + w*8192 + h*4096}")
        for i in range(4):
            va = vKsrc[i] if kind == "k" else vVsrc
            A(f"buffer_load_dwordx4 v{va}, {srd}, s44 offen offset:{i*1024} nt lds")
    assert not extra
    for need, n, nm in ev:
        A(f"s_waitcnt vmcnt({4*(NG - need)})\ns_barrier ; {nm}"); nbar += 1
    assert nbar == 19, nbar
    A(f"""
    s_endpgm
    L_compute:
    v_lshrrev_b32 v{T0}, 5, v0
    v_and_b32 v{T0+1}, 31, v0
    v_xor_b32 v{T0+2}, v{T0}, v7
    v_lshlrev_b32 v{T0+2}, 4, v{T0+2}
    v_bfe_u32 v{T0+3}, v0, 2, 2
    v_lshl_add_u32 v{T0+4}, v{T0}, 2, v{T0+3}
    v_xor_b32 v{T0+5}, s36, v{T0+3}
    v_lshlrev_b32 v{T0+5}, 6, v{T0+5}
    v_lshl_add_u32 v{T0+5}, v{T0+4}, 8, v{T0+5}
    v_and_b32 v{T0+6}, 1, v6
    v_lshl_add_u32 v{T0+5}, v{T0+6}, 5, v{T0+5}
    v_and_b32 v{T0+6}, 3, v0
    v_lshl_add_u32 v{T0+5}, v{T0+6}, 3, v{T0+5}
    v_add_u32 v{vVrd[0]}, s37, v{T0+5}
    """)
    for j in range(1, 4):
        A(f"""
        s_xor_b32 s41, s36, {j}
        s_lshl_b32 s41, s41, 15
        s_add_u32 s41, s41, {RING0}
        v_add_u32 v{vVrd[j]}, s41, v{T0+5}
        """)
    A(f"v_lshl_add_u32 v{vKrd[0]}, v{T0+1}, 8, v{T0+2}")
    for j in range(1, 8): A(f"v_xor_b32 v{vKrd[j]}, {j*32}, v{vKrd[0]}")
    A(f"""
    {"; s45 = log2(e), s[58:59] = 1/sqrt(D)" if mimic else "; s45 = log2(e)/sqrt(D)"}
    s_mov_b32 s45, {hex(f2u(C))}
    {f"s_mov_b32 s58, {hex(f2u(SC))}; s_mov_b32 s59, s58".replace("; ", chr(10)) if mimic else ""}
    v_mov_b32 v{vM}, 0xff800000
    v_mov_b32 v{vZero}, 0
    s_lshl_b32 s42, s38, 2
    s_add_u32 s42, s42, s36
    """)
    if near is None: A(f"""
    s_lshl_b32 s50, s42, 7
    s_lshl_b32 s48, s38, 11
    s_lshl_b32 s41, s39, 8
    s_add_u32 s49, s48, s41
    s_add_u32 s49, s49, {hex(ML_OFF)}
    s_lshl_b32 s41, s39, 5
    s_add_u32 s48, s48, s41
    s_add_u32 s48, s48, {hex(ML_OFF)}
    s_lshl_b32 s46, s42, 14
    s_lshl_b32 s41, s39, 8
    s_add_u32 s47, s46, s41
    s_add_u32 s47, s47, {hex(DATA_OFF)}
    s_lshl_b32 s41, s39, 11
    s_add_u32 s46, s46, s41
    s_add_u32 s46, s46, {hex(DATA_OFF)}
    """)
    else: A(f"""
    s_bfe_u32 s56, s2, 0x10002
    s_xor_b32 s56, s56, {near}
    s_lshl_b32 s56, s56, 13
    s_lshr_b32 s41, s42, 6
    s_lshl_b32 s41, s41, 14
    s_and_b32 s50, s42, 63
    s_lshl_b32 s50, s50, 7
    s_add_u32 s50, s50, s41
    s_add_u32 s50, s50, s56
    s_lshr_b32 s41, s38, 2
    s_lshl_b32 s41, s41, 14
    s_and_b32 s48, s38, 3
    s_lshl_b32 s48, s48, 11
    s_add_u32 s48, s48, s41
    s_add_u32 s48, s48, s56
    s_add_u32 s48, s48, {hex(ML_OFF)}
    s_lshl_b32 s41, s39, 8
    s_add_u32 s49, s48, s41
    s_lshl_b32 s41, s39, 5
    s_add_u32 s48, s48, s41
    s_lshl_b32 s46, s42, 15
    s_bfe_u32 s41, s42, 0x10006
    s_lshl_b32 s41, s41, 13
    s_xor_b32 s41, s41, s56
    s_add_u32 s46, s46, s41
    s_add_u32 s46, s46, {hex(DATA_OFF)}
    s_lshl_b32 s41, s39, 8
    s_add_u32 s47, s46, s41
    s_and_b32 s41, s39, 3
    s_lshl_b32 s41, s41, 11
    s_add_u32 s46, s46, s41
    s_lshr_b32 s41, s39, 2
    s_lshl_b32 s41, s41, 14
    s_add_u32 s46, s46, s41
    """)
    A(f"""
    s_lshl_b32 s52, s36, 6
    s_lshl_b32 s55, 1, s39
    s_movk_i32 s54, 0xff
    s_mov_b32 s43, {hex(spin)}
    v_lshlrev_b32 v2, 3, v0
    v_bfe_u32 v{T0+4}, v0, 2, {3 if near is None else 2}
    v_lshlrev_b32 v1, 11, v{T0+4}
    {"" if near is None else f"v_bfe_u32 v{T0+4}, v0, 4, 1; v_lshl_add_u32 v1, v{T0+4}, 14, v1".replace("; ", chr(10))}
    v_lshl_add_u32 v1, v{T0}, 6, v1
    v_lshl_add_u32 v1, v{T0+6}, 4, v1
    v_lshlrev_b32 v3, 4, v0
    v_lshrrev_b32 v4, 4, v0
    v_lshlrev_b32 v4, 8, v4
    v_lshl_add_u32 v4, v{T0+6}, 3, v4
    v_lshlrev_b32 v5, 8, v{T0+6}
    v_bfe_u32 v{T0+4}, v0, 3, 1
    v_lshl_add_u32 v5, v{T0+4}, 5, v5
    v_lshl_add_u32 v5, v{T0}, 4, v5
    v_bfe_u32 v{T0+4}, v0, 2, 1
    v_lshl_add_u32 v5, v{T0+4}, 3, v5
    v_bfe_u32 v{T0+4}, v0, 4, 1
    v_lshl_add_u32 v5, v{T0+4}, 2, v5
    v_mov_b32 v{vPA}, s55
    v_mov_b32 v{vPB}, s55
    s_lshl_b32 s41, s38, 13
    s_lshl_b32 s44, s39, 10
    s_add_u32 s41, s41, s44
    s_add_u32 s24, s10, s41
    s_addc_u32 s25, s11, 0
    s_mov_b32 s26, 0x400
    s_waitcnt vmcnt(0)
    """)
    stamp()
    A("s_barrier")
    for j in range(8): A(f"ds_read_b128 v[{Q0+4*j}:{Q0+4*j+3}], v{vKrd[j]}")
    for j in range(8): A(f"v_add_u32 v{vKrd[j]}, s37, v{vKrd[j]}")
    def maxtile(t):
        b = S0 + 16 * t
        for r in range(0, 16, 2): A(f"v_max3_f32 v{vM}, v{b+r}, v{b+r+1}, v{vM}")
    def rndtile(t):
        if not mimic: return
        b = S0 + 16 * t
        for k in range(8): A(f"v_cvt_pk_bf16_f32 v{b+2*k}, v{b+2*k}, v{b+2*k+1}")
        for k in range(8): A(f"v_and_b32 v{b+2*k+1}, 0xffff0000, v{b+2*k}\nv_lshlrev_b32 v{b+2*k}, 16, v{b+2*k}")
        for k in range(8): A(f"v_pk_mul_f32 v[{b+2*k}:{b+2*k+1}], v[{b+2*k}:{b+2*k+1}], s[58:59]")
        for k in range(8): A(f"v_cvt_pk_bf16_f32 v{b+2*k}, v{b+2*k}, v{b+2*k+1}")
        for k in range(8): A(f"v_and_b32 v{b+2*k+1}, 0xffff0000, v{b+2*k}\nv_lshlrev_b32 v{b+2*k}, 16, v{b+2*k}")
    def ptile(t):
        b = S0 + 16 * t
        for r in range(16): A(f"v_fma_f32 v{b+r}, v{b+r}, s45, -v{vM}")
        for r in range(16): A(f"v_exp_f32 v{b+r}, v{b+r}")
        for r in range(16):
            if t == 0 and r == 0: continue
            if t == 0 and r == 1: A(f"v_add_f32 v{vL}, v{b}, v{b+1}")
            else: A(f"v_add_f32 v{vL}, v{vL}, v{b+r}")
        for k in range(8): A(f"v_cvt_pk_bf16_f32 v{b+k}, v{b+2*k}, v{b+2*k+1}")
    for t in range(8):
        A(f"; ---- K row {t}: S^T tile in v[{S0+16*t}:{S0+16*t+15}]")
        if t > 0: A("s_barrier")
        for j in range(8): A(f"ds_read_b128 v[{KF0+4*j}:{KF0+4*j+3}], v{vKrd[j]} offset:{(t % R)*8192}")
        if t > 0:
            A("s_nop 3")
            maxtile(t - 1)
        b = S0 + 16 * t
        for j in range(8):
            c = "0" if j == 0 else f"v[{b}:{b+15}]"
            A(f"s_waitcnt lgkmcnt({7-j})")
            A(f"v_mfma_f32_32x32x16_bf16 v[{b}:{b+15}], v[{KF0+4*j}:{KF0+4*j+3}], v[{Q0+4*j}:{Q0+4*j+3}], {c}")
        if 0 < t < 7: rndtile(t - 1)
    stamp()
    A(f"""
    v_lshlrev_b32 v{T0+1}, 4, v0
    v_lshlrev_b32 v{T0+2}, 2, v0
    s_lshl_b32 s41, s36, 11
    v_add_u32 v{vPw}, s41, v{T0+1}
    s_lshl_b32 s41, s36, 8
    v_add_u32 v{vMLw}, s41, v{T0+2}
    """)
    for j in range(1, 4):
        A(f"v_xor_b32 v{vPr[j-1]}, {j << 11}, v{vPw}\nv_xor_b32 v{vMLr[j-1]}, {j << 8}, v{vMLw}")
    A("s_nop 1")
    maxtile(7)
    A(f"""
    v_mov_b32 v{T0}, v{vM}
    s_nop 1
    v_permlane32_swap_b32 v{T0}, v{vM}
    v_max_f32 v{vM}, v{T0}, v{vM}
    ds_write_b32 v{vMLw}, v{vM} offset:{MLBUF}
    s_waitcnt lgkmcnt(0)
    s_barrier
    ds_read_b32 v{T0}, v{vMLr[0]} offset:{MLBUF}
    ds_read_b32 v{T0+1}, v{vMLr[1]} offset:{MLBUF}
    ds_read_b32 v{T0+2}, v{vMLr[2]} offset:{MLBUF}
    s_waitcnt lgkmcnt(0)
    v_max3_f32 v{T0}, v{T0}, v{T0+1}, v{T0+2}
    v_max_f32 v{vM}, v{T0}, v{vM}
    """)
    if mimic:
        A(f"""
        v_cvt_pk_bf16_f32 v{vM}, v{vM}, v{vM}
        v_lshlrev_b32 v{vM}, 16, v{vM}
        v_mul_f32 v{vM}, s58, v{vM}
        v_cvt_pk_bf16_f32 v{vM}, v{vM}, v{vM}
        v_lshlrev_b32 v{vM}, 16, v{vM}
        """)
    A(f"v_mul_f32 v{vM}, s45, v{vM}")
    pdone = [0]
    def pwrite(t):
        b = S0 + 16 * t
        for k2 in range(2):
            A(f"ds_write_b128 v{vPw}, v[{b+4*k2}:{b+4*k2+3}] offset:{PBUF + (t & 1)*8192 + k2*1024}")
    def pread(t):
        for j in range(1, 4):
            for k2 in range(2):
                r = PB[t & 1] + (j - 1) * 8 + k2 * 4
                A(f"ds_read_b128 v[{r}:{r+3}], v{vPr[j-1]} offset:{PBUF + (t & 1)*8192 + k2*1024}")
    def pcompute(k):
        for _ in range(k):
            if pdone[0] < 8:
                if pdone[0] >= 6: rndtile(pdone[0])
                ptile(pdone[0]); pdone[0] += 1
    psched = list(psched) + [8] * 10
    pcompute(psched[0]); pwrite(0)
    A("s_waitcnt lgkmcnt(0)\ns_barrier")
    pread(0)
    pcompute(psched[1]); assert pdone[0] >= 2
    pwrite(1)
    lstate = 0
    for t in range(8):
        slot = (8 + t) % R
        order = [(j, k2) for k2 in range(2) for j in range(4)] if t == 7 else [(j, k2) for j in range(4) for k2 in range(2)]
        def vreads(lst, base):
            for idx, (j, k2) in enumerate(lst):
                r = VF0 + (base + idx) * 4
                for s in range(2):
                    A(f"ds_read_b64_tr_b16 v[{r+2*s}:{r+2*s+1}], v{vVrd[j]} offset:{slot*8192 + k2*4096 + s*2048}")
        def mfma(idx, j, k2):
            r = VF0 + idx * 4
            p = S0 + 16 * t + 4 * k2 if j == 0 else PB[t & 1] + (j - 1) * 8 + k2 * 4
            c = "0" if (t == 0 and idx == 0) else f"v[{O0}:{O0+15}]"
            A(f"v_mfma_f32_32x32x16_bf16 v[{O0}:{O0+15}], v[{r}:{r+3}], v[{p}:{p+3}], {c}")
        if t == 7:
            assert lstate == 2
            A("s_waitcnt vmcnt(0) lgkmcnt(0)\ns_barrier")
            vreads(order[:4], 0)
            A(f"""
            s_mov_b64 exec, 1
            buffer_atomic_and v{vZero}, v{vZero}, s[28:31], s50 offen
            s_mov_b64 exec, -1
            """)
            for idx in range(4):
                A(f"s_waitcnt lgkmcnt({6 - 2*idx})"); mfma(idx, *order[idx])
            A("s_barrier")
            stamp()
            vreads(order[4:], 4)
            for idx in range(4, 8):
                A(f"s_waitcnt lgkmcnt({14 - 2*idx})"); mfma(idx, *order[idx])
            break
        A("s_waitcnt lgkmcnt(0)\ns_barrier")
        vreads(order, 0)
        for idx, (j, k2) in enumerate(order):
            A(f"s_waitcnt lgkmcnt({14 - 2*idx})"); mfma(idx, j, k2)
        pread(t + 1)
        if lstate == 1 and t >= ml_step:
            A(f"""
            s_cmp_lg_u32 s36, 0
            s_cbranch_scc1 L_noml
            ds_read_b32 v{T0}, v{vMLr[0]} offset:{MLBUF + 1024}
            ds_read_b32 v{T0+1}, v{vMLr[1]} offset:{MLBUF + 1024}
            ds_read_b32 v{T0+2}, v{vMLr[2]} offset:{MLBUF + 1024}
            s_waitcnt lgkmcnt(0)
            v_add_f32 v{T0}, v{T0}, v{T0+1}
            v_add_f32 v{vL}, v{vL}, v{T0+2}
            v_add_f32 v{vL}, v{vL}, v{T0}
            s_mov_b32 exec_hi, 0
            buffer_store_dwordx2 v[{vM}:{vL}], v2, s[28:31], s49 offen sc1
            s_mov_b32 exec_hi, -1
            L_noml:
            """)
            lstate = 2
        pcompute(psched[t + 2])
        if t + 2 < 8:
            assert pdone[0] >= t + 3
            pwrite(t + 2)
        if pdone[0] == 8 and lstate == 0:
            A(f"""
            v_mov_b32 v{T0}, v{vL}
            s_nop 1
            v_permlane32_swap_b32 v{T0}, v{vL}
            v_add_f32 v{vL}, v{T0}, v{vL}
            ds_write_b32 v{vMLw}, v{vL} offset:{MLBUF + 1024}
            """)
            lstate = 1
    A("; ---- publish the partial O (one 256-B block per consuming workgroup)\ns_nop 11")
    for s in range(2):
        for k in range(4*s, 4*s + 4): A(f"v_cvt_pk_bf16_f32 v{VF0+k}, v{O0+2*k}, v{O0+2*k+1}")
        A(f"buffer_store_dwordx4 v[{VF0+4*s}:{VF0+4*s+3}], v1, s[28:31], s47 offen offset:{s*128} sc1")
    stamp()
    atom = lambda r: A(f"buffer_atomic_or v{r}, v{vZero}, s[28:31], s50 offen sc0")
    A("s_mov_b64 exec, 1\ns_waitcnt vmcnt(0)")
    stamp()
    atom(vPA)
    A(f"s_sleep {pgap}")
    atom(vPB)
    A("L_poll:")
    for r in (vPA, vPB):
        A(f"""
        s_waitcnt vmcnt(1)
        v_or_b32 v{r}, s55, v{r}
        v_cmp_eq_u32 vcc, s54, v{r}
        s_cbranch_vccnz L_poll_ok
        v_mov_b32 v{r}, s55
        """)
        atom(r)
    A(f"""
    s_sub_u32 s43, s43, 1
    s_cmp_gt_i32 s43, 0
    s_cbranch_scc1 L_poll
    L_poll_ok:
    s_mov_b64 exec, -1
    """)
    stamp()
    X, Y, U = S0, S0 + 8, S0 + 16
    e0, a, b, w0, w1, Ls = S0 + 32, S0 + 36, S0 + 37, S0 + 38, S0 + 40, S0 + 44
    A(f"""
    buffer_load_dwordx2 v[{e0}:{e0+1}], v4, s[28:31], s48 offen sc1
    buffer_load_dwordx2 v[{e0+2}:{e0+3}], v4, s[28:31], s48 offen offset:1024 sc1
    buffer_load_dwordx4 v[{X}:{X+3}], v3, s[28:31], s46 offen sc1
    buffer_load_dwordx4 v[{X+4}:{X+7}], v3, s[28:31], s46 offen offset:1024 sc1
    s_waitcnt vmcnt(2)
    v_max_f32 v{a}, v{e0}, v{e0+2}
    v_max_f32 v{b}, v{e0}, v{e0+2}
    s_waitcnt vmcnt(1)
    v_lshlrev_b32 v{Y}, 16, v{X}
    v_permlane16_swap_b32 v{a}, v{b}
    v_and_b32 v{Y+1}, 0xffff0000, v{X}
    v_max_f32 v{a}, v{a}, v{b}
    v_lshlrev_b32 v{Y+2}, 16, v{X+1}
    v_mov_b32 v{b}, v{a}
    v_and_b32 v{Y+3}, 0xffff0000, v{X+1}
    v_lshlrev_b32 v{Y+4}, 16, v{X+2}
    v_permlane32_swap_b32 v{a}, v{b}
    v_and_b32 v{Y+5}, 0xffff0000, v{X+2}
    v_max_f32 v{a}, v{a}, v{b}
    v_sub_f32 v{w0}, v{e0}, v{a}
    v_sub_f32 v{w1}, v{e0+2}, v{a}
    v_exp_f32 v{w0}, v{w0}
    v_exp_f32 v{w1}, v{w1}
    v_lshlrev_b32 v{Y+6}, 16, v{X+3}
    v_and_b32 v{Y+7}, 0xffff0000, v{X+3}
    v_mul_f32 v{Ls}, v{w0}, v{e0+1}
    v_fmac_f32 v{Ls}, v{w1}, v{e0+3}
    s_waitcnt vmcnt(0)
    v_mov_b32 v{b}, v{Ls}
    """)
    for k in range(4): A(f"v_lshlrev_b32 v{U+2*k}, 16, v{X+4+k}\nv_and_b32 v{U+2*k+1}, 0xffff0000, v{X+4+k}")
    A(f"v_permlane16_swap_b32 v{Ls}, v{b}")
    for k in range(4): A(f"v_pk_mul_f32 v[{Y+2*k}:{Y+2*k+1}], v[{Y+2*k}:{Y+2*k+1}], v[{w0}:{w0+1}] op_sel_hi:[1,0]")
    A(f"v_add_f32 v{Ls}, v{Ls}, v{b}")
    pk = lambda k: A(f"v_pk_fma_f32 v[{Y+2*k}:{Y+2*k+1}], v[{U+2*k}:{U+2*k+1}], v[{w1}:{w1+1}], v[{Y+2*k}:{Y+2*k+1}] op_sel_hi:[1,0,1]")
    pk(0); pk(1)
    A(f"v_mov_b32 v{b}, v{Ls}")
    pk(2); pk(3)
    A(f"""
    v_permlane32_swap_b32 v{Ls}, v{b}
    v_add_f32 v{Ls}, v{Ls}, v{b}
    v_permlane32_swap_b32 v{Y}, v{Y+4}
    v_permlane32_swap_b32 v{Y+1}, v{Y+5}
    v_permlane32_swap_b32 v{Y+2}, v{Y+6}
    v_permlane32_swap_b32 v{Y+3}, v{Y+7}
    v_rcp_f32 v{Ls}, v{Ls}
    v_add_f32 v{Y}, v{Y}, v{Y+4}
    v_add_f32 v{Y+2}, v{Y+2}, v{Y+6}
    v_add_f32 v{Y+1}, v{Y+1}, v{Y+5}
    v_add_f32 v{Y+3}, v{Y+3}, v{Y+7}
    v_permlane16_swap_b32 v{Y}, v{Y+2}
    s_nop 0
    v_permlane16_swap_b32 v{Y+1}, v{Y+3}
    v_add_f32 v{Y}, v{Y}, v{Y+2}
    v_add_f32 v{Y+1}, v{Y+1}, v{Y+3}
    v_mul_f32 v{Y}, v{Y}, v{Ls}
    v_mul_f32 v{Y+1}, v{Y+1}, v{Ls}
    """)
    stamp()
    A(f"v_cvt_pk_bf16_f32 v{Y}, v{Y}, v{Y+1}\nbuffer_store_dword v{Y}, v5, s[24:27], s52 offen")
    if diag:
        A("s_waitcnt vmcnt(0)")
        stamp()
        A("s_getreg_b32 s41, hwreg(HW_REG_XCC_ID)")
        A(f"s_lshl_b32 s43, s2, 2\ns_add_u32 s43, s43, s36\ns_lshl_b32 s43, s43, 6\ns_add_u32 s43, s43, {DIAG_OFF}")
        A("s_waitcnt lgkmcnt(0)\nv_mov_b32 v1, 0")
        for k in range(nst[0]):
            A(f"v_mov_b32 v2, s{64+2*k}\nbuffer_store_dword v2, v1, s[28:31], s43 offen offset:{4*k}")
        A(f"v_mov_b32 v2, s41\nbuffer_store_dword v2, v1, s[28:31], s43 offen offset:60")
    A("L_end:\ns_endpgm")
    return "\n".join([HEADER + f"; @launch grid=(256,1,1) block=(320,1,1) lds={lds}",
           '.amdgcn_target "amdgcn-amd-amdhsa--gfx950"', ".text",
           ".globl standalone__gqa_softmax__sampling_kernel", ".p2align 8",
           ".type standalone__gqa_softmax__sampling_kernel,@function",
           "standalone__gqa_softmax__sampling_kernel:"] + L + [f""".section .rodata,"a"
.p2align 6
.amdhsa_kernel standalone__gqa_softmax__sampling_kernel
  .amdhsa_next_free_vgpr 256
  .amdhsa_next_free_sgpr {96 if diag else 64}
  .amdhsa_accum_offset 256
  .amdhsa_group_segment_fixed_size 0
  .amdhsa_kernarg_size 48
  .amdhsa_user_sgpr_count 2
  .amdhsa_user_sgpr_kernarg_segment_ptr 1
  .amdhsa_system_sgpr_workgroup_id_x 1
  .amdhsa_float_denorm_mode_32 3
.end_amdhsa_kernel
"""])

if __name__ == "__main__":
    cfg = json.loads(sys.argv[1]) if len(sys.argv) > 1 else {}
    print(gen(**cfg))
```

```python
import sys, json, struct, math

HEADER = """; GQA decode attention, B=8 Hq=32 Hkv=4 Sq=4 Sk=8192 D=128, bf16 in / bf16 out.
;
"""

def f2u(x): return struct.unpack("<I", struct.pack("<f", x))[0]

def gen(spin=1 << 21, W=11, bq=10, t1=4, t2=6, pgap=5, psched=(1, 1, 2, 2, 2), ml_step=5,
        perm=(4, 5, 7, 0, 1, 2, 3, 6), diag=False, near=None, mimic=True, npoll=2, fflip=0):
    L = []
    def A(s):
        for ln in s.split("\n"):
            ln = ln.strip()
            if ln: L.append(("" if ln.endswith(":") else "    ") + ln)
    R = 4
    PBUF, MLBUF, RING0 = 0, 16384, 20480
    lds = RING0 + 4 * R * 8192
    C = math.log2(math.e) / math.sqrt(128.0)
    if mimic: C = math.log2(math.e)
    SC = 128.0 ** -0.5
    ML_OFF, DATA_OFF, DIAG_OFF = 0x10000, 0x80000, 0x800000
    WS_BYTES = 0x900000 if diag else DATA_OFF + 0x200000
    if near is not None:
        ML_OFF, DATA_OFF = 0x10000, 0x400000
        WS_BYTES = 0x900000 if diag else 0x800000
    vKsrc = [1, 2, 3, 4]; vVsrc = 5; vKrd = list(range(6, 14)); vVrd = [14, 15, 16, 17]
    vM, vL = 18, 19
    Q0, KF0, S0, VF0, T0 = 20, 52, 84, 212, 244
    O0 = 20; PB = [36, 60]
    vPw, vPr, vMLw, vMLr = 6, [7, 8, 9], 10, [11, 12, 13]
    vZero, vPA, vPB = T0 + 8, T0 + 9, T0 + 10
    PRS = [vPA, vPB, T0 + 11, T0 + 7][:npoll]
    nst = [0]
    def stamp():
        if diag and nst[0] < 15:
            A(f"s_memrealtime s[{64+2*nst[0]}:{65+2*nst[0]}]"); nst[0] += 1
    dec = []; k = 0; first = True
    while k < 8:
        n = 1
        while k + n < 8 and perm[k + n] == perm[k] + n: n += 1
        dst = "s40" if first else "s41"
        dec.append(f"s_bfe_u32 {dst}, s2, {hex((n << 16) | k)}")
        if perm[k]: dec.append(f"s_lshl_b32 {dst}, {dst}, {perm[k]}")
        if not first: dec.append("s_or_b32 s40, s40, s41")
        first = False; k += n
    stamp()
    A(f"""
    s_load_dwordx8 s[4:11], s[0:1], 0
    s_load_dwordx2 s[28:29], s[0:1], 40
    s_cmp_ge_u32 s2, 0x100
    s_cbranch_scc1 L_end
    v_lshrrev_b32 v1, 6, v0
    v_and_b32 v0, 63, v0
    v_readfirstlane_b32 s36, v1
    {chr(10).join(dec)}
    s_lshr_b32 s38, s40, 3
    s_and_b32 s39, s40, 7
    s_lshl_b32 s40, s40, 18
    v_lshrrev_b32 v6, 4, v0
    v_and_b32 v7, 15, v0
    v_xor_b32 v8, v7, v6
    v_lshlrev_b32 v8, 4, v8
    v_lshl_add_u32 v1, v6, 8, v8
    v_xor_b32 v2, 64, v1
    v_xor_b32 v3, 0x80, v1
    v_xor_b32 v4, 0xc0, v1
    s_mov_b32 s18, 0x40000
    s_mov_b32 s19, 0x20000
    s_lshl_b32 s37, s36, 15
    s_add_u32 s37, s37, {RING0}
    s_lshl_b32 s44, s36, 13
    s_mov_b32 m0, s37
    s_add_u32 s43, s44, 0x1000
    s_cmp_eq_u32 s36, 4
    s_waitcnt lgkmcnt(0)
    s_cbranch_scc1 L_loader
    s_add_u32 s16, s6, s40
    s_addc_u32 s17, s7, 0
    """)
    for i in range(4): A(f"buffer_load_dwordx4 v{vKsrc[i]}, s[16:19], s44 offen offset:{i*1024} nt lds")
    A("s_add_u32 m0, s37, 4096\ns_lshl_b32 s41, s38, 13")
    for i in range(4): A(f"buffer_load_dwordx4 v{vKsrc[i]}, s[16:19], s43 offen offset:{i*1024} nt lds")
    A(f"""
    s_add_u32 s24, s4, s41
    s_addc_u32 s25, s5, 0
    s_mov_b32 s26, 0x2000
    s_mov_b32 s27, 0x20000
    s_and_b32 s41, s36, 1
    s_lshl_b32 s41, s41, 7
    v_xor_b32 v9, s41, v1
    v_xor_b32 v10, s41, v2
    s_lshl_b32 s41, s36, 11
    s_mov_b32 m0, s41
    s_mov_b32 s30, {hex(WS_BYTES)}
    s_mov_b32 s31, 0x20000
    buffer_load_dwordx4 v9, s[24:27], s41 offen lds
    buffer_load_dwordx4 v10, s[24:27], s41 offen offset:1024 lds
    s_branch L_compute
    L_loader:
    s_setprio 3
    s_add_u32 s16, s6, s40
    s_addc_u32 s17, s7, 0
    s_add_u32 s20, s8, s40
    s_addc_u32 s21, s9, 0
    s_mov_b32 s22, 0x40000
    s_mov_b32 s23, 0x20000
    v_lshlrev_b32 v8, 2, v6
    v_xor_b32 v8, v7, v8
    v_lshlrev_b32 v8, 4, v8
    v_lshl_add_u32 v{vVsrc}, v6, 8, v8
    """)
    groups = []
    for n in range(1, 16):
        if n == 15: groups += [(n, w, h) for h in range(2) for w in range(4)]
        else: groups += [(n, w, h) for w in range(4) for h in range(2)]
    NG = len(groups)
    rowname = lambda n: f"K row {n}" if n < 8 else f"V row {n-8}"
    ev = [(8 * n, n, rowname(n) + " landed") for n in range(1, 15)] + [(8 * 14 + 4, 15, "first half of V row 7 landed"), (8 * 15, 15, "V row 7 landed")]
    extra = {}
    extra.setdefault(bq, []).append("Q and K row 0 landed")
    k7 = 8 * 7 + W - 1
    extra.setdefault(k7 + t1, []).append("row max exchange"); extra.setdefault(k7 + t2, []).append("first P tile")
    assert t1 <= t2 < 8 and bq < 8 + W - 1
    freed = R; nbar = 0
    for gi in range(NG):
        if gi >= W - 1:
            landed = gi - (W - 1)
            A(f"s_waitcnt vmcnt({4*(W-1)})")
            while ev and ev[0][0] <= landed:
                A(f"s_barrier ; {ev[0][2]}"); nbar += 1
                freed = ev[0][1] + R
                ev.pop(0)
        for nm in extra.pop(gi, []):
            A(f"s_barrier ; {nm}"); nbar += 1
        n, w, h = groups[gi]
        assert n < freed, (gi, n, freed)
        kind, t = ("k", n) if n < 8 else ("v", n - 8)
        srd = "s[16:19]" if kind == "k" else "s[20:23]"
        A(f"s_mov_b32 m0, {RING0 + w*R*8192 + (n % R)*8192 + h*4096}")
        A(f"s_mov_b32 s44, {t*32768 + w*8192 + h*4096}")
        for i in range(4):
            va = vKsrc[i] if kind == "k" else vVsrc
            A(f"buffer_load_dwordx4 v{va}, {srd}, s44 offen offset:{i*1024} nt lds")
    assert not extra
    for need, n, nm in ev:
        A(f"s_waitcnt vmcnt({4*(NG - need)})\ns_barrier ; {nm}"); nbar += 1
    assert nbar == 19, nbar
    A(f"""
    s_endpgm
    L_compute:
    v_lshrrev_b32 v{T0}, 5, v0
    v_and_b32 v{T0+1}, 31, v0
    v_xor_b32 v{T0+2}, v{T0}, v7
    v_lshlrev_b32 v{T0+2}, 4, v{T0+2}
    v_bfe_u32 v{T0+3}, v0, 2, 2
    v_lshl_add_u32 v{T0+4}, v{T0}, 2, v{T0+3}
    v_xor_b32 v{T0+5}, s36, v{T0+3}
    v_lshlrev_b32 v{T0+5}, 6, v{T0+5}
    v_lshl_add_u32 v{T0+5}, v{T0+4}, 8, v{T0+5}
    v_and_b32 v{T0+6}, 1, v6
    v_lshl_add_u32 v{T0+5}, v{T0+6}, 5, v{T0+5}
    v_and_b32 v{T0+6}, 3, v0
    v_lshl_add_u32 v{T0+5}, v{T0+6}, 3, v{T0+5}
    v_add_u32 v{vVrd[0]}, s37, v{T0+5}
    """)
    for j in range(1, 4):
        A(f"""
        s_xor_b32 s41, s36, {j}
        s_lshl_b32 s41, s41, 15
        s_add_u32 s41, s41, {RING0}
        v_add_u32 v{vVrd[j]}, s41, v{T0+5}
        """)
    A(f"v_lshl_add_u32 v{vKrd[0]}, v{T0+1}, 8, v{T0+2}")
    for j in range(1, 8): A(f"v_xor_b32 v{vKrd[j]}, {j*32}, v{vKrd[0]}")
    A(f"""
    {"; s45 = log2(e), s[58:59] = 1/sqrt(D)" if mimic else "; s45 = log2(e)/sqrt(D)"}
    s_mov_b32 s45, {hex(f2u(C))}
    {f"s_mov_b32 s58, {hex(f2u(SC))}; s_mov_b32 s59, s58".replace("; ", chr(10)) if mimic else ""}
    v_mov_b32 v{vM}, 0xff800000
    v_mov_b32 v{vZero}, 0
    s_lshl_b32 s42, s38, 2
    s_add_u32 s42, s42, s36
    """)
    if near is None: A(f"""
    s_lshl_b32 s50, s42, 7
    {f's_xor_b32 s50, s50, 0x2000' if fflip else ''}
    s_lshl_b32 s48, s38, 11
    s_lshl_b32 s41, s39, 8
    s_add_u32 s49, s48, s41
    s_add_u32 s49, s49, {hex(ML_OFF)}
    s_lshl_b32 s41, s39, 5
    s_add_u32 s48, s48, s41
    s_add_u32 s48, s48, {hex(ML_OFF)}
    s_lshl_b32 s46, s42, 14
    s_lshl_b32 s41, s39, 8
    s_add_u32 s47, s46, s41
    s_add_u32 s47, s47, {hex(DATA_OFF)}
    s_lshl_b32 s41, s39, 11
    s_add_u32 s46, s46, s41
    s_add_u32 s46, s46, {hex(DATA_OFF)}
    """)
    else: A(f"""
    s_bfe_u32 s56, s2, 0x10002
    s_xor_b32 s56, s56, {near}
    s_lshl_b32 s56, s56, 13
    s_lshr_b32 s41, s42, 6
    s_lshl_b32 s41, s41, 14
    s_and_b32 s50, s42, 63
    s_lshl_b32 s50, s50, 7
    s_add_u32 s50, s50, s41
    s_add_u32 s50, s50, s56
    s_lshr_b32 s41, s38, 2
    s_lshl_b32 s41, s41, 14
    s_and_b32 s48, s38, 3
    s_lshl_b32 s48, s48, 11
    s_add_u32 s48, s48, s41
    s_add_u32 s48, s48, s56
    s_add_u32 s48, s48, {hex(ML_OFF)}
    s_lshl_b32 s41, s39, 8
    s_add_u32 s49, s48, s41
    s_lshl_b32 s41, s39, 5
    s_add_u32 s48, s48, s41
    s_lshl_b32 s46, s42, 15
    s_bfe_u32 s41, s42, 0x10006
    s_lshl_b32 s41, s41, 13
    s_xor_b32 s41, s41, s56
    s_add_u32 s46, s46, s41
    s_add_u32 s46, s46, {hex(DATA_OFF)}
    s_lshl_b32 s41, s39, 8
    s_add_u32 s47, s46, s41
    s_and_b32 s41, s39, 3
    s_lshl_b32 s41, s41, 11
    s_add_u32 s46, s46, s41
    s_lshr_b32 s41, s39, 2
    s_lshl_b32 s41, s41, 14
    s_add_u32 s46, s46, s41
    """)
    A(f"""
    s_lshl_b32 s52, s36, 6
    s_lshl_b32 s55, 1, s39
    s_movk_i32 s54, 0xff
    s_mov_b32 s43, {hex(spin)}
    v_lshlrev_b32 v2, 3, v0
    v_bfe_u32 v{T0+4}, v0, 2, {3 if near is None else 2}
    v_lshlrev_b32 v1, 11, v{T0+4}
    {"" if near is None else f"v_bfe_u32 v{T0+4}, v0, 4, 1; v_lshl_add_u32 v1, v{T0+4}, 14, v1".replace("; ", chr(10))}
    v_lshl_add_u32 v1, v{T0}, 6, v1
    v_lshl_add_u32 v1, v{T0+6}, 4, v1
    v_lshlrev_b32 v3, 4, v0
    v_lshrrev_b32 v4, 4, v0
    v_lshlrev_b32 v4, 8, v4
    v_lshl_add_u32 v4, v{T0+6}, 3, v4
    v_lshlrev_b32 v5, 8, v{T0+6}
    v_bfe_u32 v{T0+4}, v0, 3, 1
    v_lshl_add_u32 v5, v{T0+4}, 5, v5
    v_lshl_add_u32 v5, v{T0}, 4, v5
    v_bfe_u32 v{T0+4}, v0, 2, 1
    v_lshl_add_u32 v5, v{T0+4}, 3, v5
    v_bfe_u32 v{T0+4}, v0, 4, 1
    v_lshl_add_u32 v5, v{T0+4}, 2, v5
    {chr(10).join(f'v_mov_b32 v{r}, s55' for r in PRS)}
    s_lshl_b32 s41, s38, 13
    s_lshl_b32 s44, s39, 10
    s_add_u32 s41, s41, s44
    s_add_u32 s24, s10, s41
    s_addc_u32 s25, s11, 0
    s_mov_b32 s26, 0x400
    s_waitcnt vmcnt(0)
    """)
    stamp()
    A("s_barrier")
    for j in range(8): A(f"ds_read_b128 v[{Q0+4*j}:{Q0+4*j+3}], v{vKrd[j]}")
    for j in range(8): A(f"v_add_u32 v{vKrd[j]}, s37, v{vKrd[j]}")
    def maxtile(t):
        b = S0 + 16 * t
        for r in range(0, 16, 2): A(f"v_max3_f32 v{vM}, v{b+r}, v{b+r+1}, v{vM}")
    def rndtile(t):
        if not mimic: return
        b = S0 + 16 * t
        for k in range(8): A(f"v_cvt_pk_bf16_f32 v{b+2*k}, v{b+2*k}, v{b+2*k+1}")
        for k in range(8): A(f"v_and_b32 v{b+2*k+1}, 0xffff0000, v{b+2*k}\nv_lshlrev_b32 v{b+2*k}, 16, v{b+2*k}")
        for k in range(8): A(f"v_pk_mul_f32 v[{b+2*k}:{b+2*k+1}], v[{b+2*k}:{b+2*k+1}], s[58:59]")
        for k in range(8): A(f"v_cvt_pk_bf16_f32 v{b+2*k}, v{b+2*k}, v{b+2*k+1}")
        for k in range(8): A(f"v_and_b32 v{b+2*k+1}, 0xffff0000, v{b+2*k}\nv_lshlrev_b32 v{b+2*k}, 16, v{b+2*k}")
    def ptile(t):
        b = S0 + 16 * t
        for r in range(16): A(f"v_fma_f32 v{b+r}, v{b+r}, s45, -v{vM}")
        for r in range(16): A(f"v_exp_f32 v{b+r}, v{b+r}")
        for r in range(16):
            if t == 0 and r == 0: continue
            if t == 0 and r == 1: A(f"v_add_f32 v{vL}, v{b}, v{b+1}")
            else: A(f"v_add_f32 v{vL}, v{vL}, v{b+r}")
        for k in range(8): A(f"v_cvt_pk_bf16_f32 v{b+k}, v{b+2*k}, v{b+2*k+1}")
    for t in range(8):
        A(f"; ---- K row {t}: S^T tile in v[{S0+16*t}:{S0+16*t+15}]")
        if t > 0: A("s_barrier")
        for j in range(8): A(f"ds_read_b128 v[{KF0+4*j}:{KF0+4*j+3}], v{vKrd[j]} offset:{(t % R)*8192}")
        if t > 0:
            A("s_nop 3")
            maxtile(t - 1)
        b = S0 + 16 * t
        for j in range(8):
            c = "0" if j == 0 else f"v[{b}:{b+15}]"
            A(f"s_waitcnt lgkmcnt({7-j})")
            A(f"v_mfma_f32_32x32x16_bf16 v[{b}:{b+15}], v[{KF0+4*j}:{KF0+4*j+3}], v[{Q0+4*j}:{Q0+4*j+3}], {c}")
        if 0 < t < 7: rndtile(t - 1)
    stamp()
    A(f"""
    v_lshlrev_b32 v{T0+1}, 4, v0
    v_lshlrev_b32 v{T0+2}, 2, v0
    s_lshl_b32 s41, s36, 11
    v_add_u32 v{vPw}, s41, v{T0+1}
    s_lshl_b32 s41, s36, 8
    v_add_u32 v{vMLw}, s41, v{T0+2}
    """)
    for j in range(1, 4):
        A(f"v_xor_b32 v{vPr[j-1]}, {j << 11}, v{vPw}\nv_xor_b32 v{vMLr[j-1]}, {j << 8}, v{vMLw}")
    A("s_nop 1")
    maxtile(7)
    A(f"""
    v_mov_b32 v{T0}, v{vM}
    s_nop 1
    v_permlane32_swap_b32 v{T0}, v{vM}
    v_max_f32 v{vM}, v{T0}, v{vM}
    ds_write_b32 v{vMLw}, v{vM} offset:{MLBUF}
    s_waitcnt lgkmcnt(0)
    s_barrier
    ds_read_b32 v{T0}, v{vMLr[0]} offset:{MLBUF}
    ds_read_b32 v{T0+1}, v{vMLr[1]} offset:{MLBUF}
    ds_read_b32 v{T0+2}, v{vMLr[2]} offset:{MLBUF}
    s_waitcnt lgkmcnt(0)
    v_max3_f32 v{T0}, v{T0}, v{T0+1}, v{T0+2}
    v_max_f32 v{vM}, v{T0}, v{vM}
    """)
    if mimic:
        A(f"""
        v_cvt_pk_bf16_f32 v{vM}, v{vM}, v{vM}
        v_lshlrev_b32 v{vM}, 16, v{vM}
        v_mul_f32 v{vM}, s58, v{vM}
        v_cvt_pk_bf16_f32 v{vM}, v{vM}, v{vM}
        v_lshlrev_b32 v{vM}, 16, v{vM}
        """)
    A(f"v_mul_f32 v{vM}, s45, v{vM}")
    pdone = [0]
    def pwrite(t):
        b = S0 + 16 * t
        for k2 in range(2):
            A(f"ds_write_b128 v{vPw}, v[{b+4*k2}:{b+4*k2+3}] offset:{PBUF + (t & 1)*8192 + k2*1024}")
    def pread(t):
        for j in range(1, 4):
            for k2 in range(2):
                r = PB[t & 1] + (j - 1) * 8 + k2 * 4
                A(f"ds_read_b128 v[{r}:{r+3}], v{vPr[j-1]} offset:{PBUF + (t & 1)*8192 + k2*1024}")
    def pcompute(k):
        for _ in range(k):
            if pdone[0] < 8:
                if pdone[0] >= 6: rndtile(pdone[0])
                ptile(pdone[0]); pdone[0] += 1
    psched = list(psched) + [8] * 10
    pcompute(psched[0]); pwrite(0)
    A("s_waitcnt lgkmcnt(0)\ns_barrier")
    pread(0)
    pcompute(psched[1]); assert pdone[0] >= 2
    pwrite(1)
    lstate = 0
    for t in range(8):
        slot = (8 + t) % R
        order = [(j, k2) for k2 in range(2) for j in range(4)] if t == 7 else [(j, k2) for j in range(4) for k2 in range(2)]
        def vreads(lst, base):
            for idx, (j, k2) in enumerate(lst):
                r = VF0 + (base + idx) * 4
                for s in range(2):
                    A(f"ds_read_b64_tr_b16 v[{r+2*s}:{r+2*s+1}], v{vVrd[j]} offset:{slot*8192 + k2*4096 + s*2048}")
        def mfma(idx, j, k2):
            r = VF0 + idx * 4
            p = S0 + 16 * t + 4 * k2 if j == 0 else PB[t & 1] + (j - 1) * 8 + k2 * 4
            c = "0" if (t == 0 and idx == 0) else f"v[{O0}:{O0+15}]"
            A(f"v_mfma_f32_32x32x16_bf16 v[{O0}:{O0+15}], v[{r}:{r+3}], v[{p}:{p+3}], {c}")
        if t == 7:
            assert lstate == 2
            A("s_waitcnt vmcnt(0) lgkmcnt(0)\ns_barrier")
            vreads(order[:4], 0)
            A(f"""
            s_mov_b64 exec, 1
            buffer_atomic_and v{vZero}, v{vZero}, s[28:31], s50 offen
            s_mov_b64 exec, -1
            """)
            for idx in range(4):
                A(f"s_waitcnt lgkmcnt({6 - 2*idx})"); mfma(idx, *order[idx])
            A("s_barrier")
            stamp()
            vreads(order[4:], 4)
            for idx in range(4, 8):
                A(f"s_waitcnt lgkmcnt({14 - 2*idx})"); mfma(idx, *order[idx])
            break
        A("s_waitcnt lgkmcnt(0)\ns_barrier")
        vreads(order, 0)
        for idx, (j, k2) in enumerate(order):
            A(f"s_waitcnt lgkmcnt({14 - 2*idx})"); mfma(idx, j, k2)
        pread(t + 1)
        if lstate == 1 and t >= ml_step:
            A(f"""
            s_cmp_lg_u32 s36, 0
            s_cbranch_scc1 L_noml
            ds_read_b32 v{T0}, v{vMLr[0]} offset:{MLBUF + 1024}
            ds_read_b32 v{T0+1}, v{vMLr[1]} offset:{MLBUF + 1024}
            ds_read_b32 v{T0+2}, v{vMLr[2]} offset:{MLBUF + 1024}
            s_waitcnt lgkmcnt(0)
            v_add_f32 v{T0}, v{T0}, v{T0+1}
            v_add_f32 v{vL}, v{vL}, v{T0+2}
            v_add_f32 v{vL}, v{vL}, v{T0}
            s_mov_b32 exec_hi, 0
            buffer_store_dwordx2 v[{vM}:{vL}], v2, s[28:31], s49 offen sc1
            s_mov_b32 exec_hi, -1
            L_noml:
            """)
            lstate = 2
        pcompute(psched[t + 2])
        if t + 2 < 8:
            assert pdone[0] >= t + 3
            pwrite(t + 2)
        if pdone[0] == 8 and lstate == 0:
            A(f"""
            v_mov_b32 v{T0}, v{vL}
            s_nop 1
            v_permlane32_swap_b32 v{T0}, v{vL}
            v_add_f32 v{vL}, v{T0}, v{vL}
            ds_write_b32 v{vMLw}, v{vL} offset:{MLBUF + 1024}
            """)
            lstate = 1
    A("; ---- publish the partial O (one 256-B block per consuming workgroup)\ns_nop 11")
    for s in range(2):
        for k in range(4*s, 4*s + 4): A(f"v_cvt_pk_bf16_f32 v{VF0+k}, v{O0+2*k}, v{O0+2*k+1}")
        A(f"buffer_store_dwordx4 v[{VF0+4*s}:{VF0+4*s+3}], v1, s[28:31], s47 offen offset:{s*128} sc1")
    stamp()
    atom = lambda r: A(f"buffer_atomic_or v{r}, v{vZero}, s[28:31], s50 offen sc0")
    A("s_mov_b64 exec, 1\ns_waitcnt vmcnt(0)")
    stamp()
    A("; arrive, then poll with two atomics in flight; the short sleep sets them half a round trip apart, which halves\n; the time between the last arrival and the poll that sees it")
    for k, r in enumerate(PRS):
        if k: A(f"s_sleep {pgap}")
        atom(r)
    A("L_poll:")
    for r in PRS:
        A(f"""
        s_waitcnt vmcnt({npoll - 1})
        v_or_b32 v{r}, s55, v{r}
        v_cmp_eq_u32 vcc, s54, v{r}
        s_cbranch_vccnz L_poll_ok
        v_mov_b32 v{r}, s55
        """)
        atom(r)
    A(f"""
    s_sub_u32 s43, s43, 1
    s_cmp_gt_i32 s43, 0
    s_cbranch_scc1 L_poll
    L_poll_ok:
    s_mov_b64 exec, -1
    """)
    stamp()
    X, Y, U = S0, S0 + 8, S0 + 16
    e0, a, b, w0, w1, Ls = S0 + 32, S0 + 36, S0 + 37, S0 + 38, S0 + 40, S0 + 44
    A(f"""
    buffer_load_dwordx2 v[{e0}:{e0+1}], v4, s[28:31], s48 offen sc1
    buffer_load_dwordx2 v[{e0+2}:{e0+3}], v4, s[28:31], s48 offen offset:1024 sc1
    buffer_load_dwordx4 v[{X}:{X+3}], v3, s[28:31], s46 offen sc1
    buffer_load_dwordx4 v[{X+4}:{X+7}], v3, s[28:31], s46 offen offset:1024 sc1
    s_waitcnt vmcnt(2)
    v_max_f32 v{a}, v{e0}, v{e0+2}
    v_max_f32 v{b}, v{e0}, v{e0+2}
    s_waitcnt vmcnt(1)
    v_lshlrev_b32 v{Y}, 16, v{X}
    v_permlane16_swap_b32 v{a}, v{b}
    v_and_b32 v{Y+1}, 0xffff0000, v{X}
    v_max_f32 v{a}, v{a}, v{b}
    v_lshlrev_b32 v{Y+2}, 16, v{X+1}
    v_mov_b32 v{b}, v{a}
    v_and_b32 v{Y+3}, 0xffff0000, v{X+1}
    v_lshlrev_b32 v{Y+4}, 16, v{X+2}
    v_permlane32_swap_b32 v{a}, v{b}
    v_and_b32 v{Y+5}, 0xffff0000, v{X+2}
    v_max_f32 v{a}, v{a}, v{b}
    v_sub_f32 v{w0}, v{e0}, v{a}
    v_sub_f32 v{w1}, v{e0+2}, v{a}
    v_exp_f32 v{w0}, v{w0}
    v_exp_f32 v{w1}, v{w1}
    v_lshlrev_b32 v{Y+6}, 16, v{X+3}
    v_and_b32 v{Y+7}, 0xffff0000, v{X+3}
    v_mul_f32 v{Ls}, v{w0}, v{e0+1}
    v_fmac_f32 v{Ls}, v{w1}, v{e0+3}
    s_waitcnt vmcnt(0)
    v_mov_b32 v{b}, v{Ls}
    """)
    for k in range(4): A(f"v_lshlrev_b32 v{U+2*k}, 16, v{X+4+k}\nv_and_b32 v{U+2*k+1}, 0xffff0000, v{X+4+k}")
    A(f"v_permlane16_swap_b32 v{Ls}, v{b}")
    for k in range(4): A(f"v_pk_mul_f32 v[{Y+2*k}:{Y+2*k+1}], v[{Y+2*k}:{Y+2*k+1}], v[{w0}:{w0+1}] op_sel_hi:[1,0]")
    A(f"v_add_f32 v{Ls}, v{Ls}, v{b}")
    pk = lambda k: A(f"v_pk_fma_f32 v[{Y+2*k}:{Y+2*k+1}], v[{U+2*k}:{U+2*k+1}], v[{w1}:{w1+1}], v[{Y+2*k}:{Y+2*k+1}] op_sel_hi:[1,0,1]")
    pk(0); pk(1)
    A(f"v_mov_b32 v{b}, v{Ls}")
    pk(2); pk(3)
    A(f"""
    v_permlane32_swap_b32 v{Ls}, v{b}
    v_add_f32 v{Ls}, v{Ls}, v{b}
    v_permlane32_swap_b32 v{Y}, v{Y+4}
    v_permlane32_swap_b32 v{Y+1}, v{Y+5}
    v_permlane32_swap_b32 v{Y+2}, v{Y+6}
    v_permlane32_swap_b32 v{Y+3}, v{Y+7}
    v_rcp_f32 v{Ls}, v{Ls}
    v_add_f32 v{Y}, v{Y}, v{Y+4}
    v_add_f32 v{Y+2}, v{Y+2}, v{Y+6}
    v_add_f32 v{Y+1}, v{Y+1}, v{Y+5}
    v_add_f32 v{Y+3}, v{Y+3}, v{Y+7}
    v_permlane16_swap_b32 v{Y}, v{Y+2}
    s_nop 0
    v_permlane16_swap_b32 v{Y+1}, v{Y+3}
    v_add_f32 v{Y}, v{Y}, v{Y+2}
    v_add_f32 v{Y+1}, v{Y+1}, v{Y+3}
    v_mul_f32 v{Y}, v{Y}, v{Ls}
    v_mul_f32 v{Y+1}, v{Y+1}, v{Ls}
    """)
    stamp()
    A(f"v_cvt_pk_bf16_f32 v{Y}, v{Y}, v{Y+1}\nbuffer_store_dword v{Y}, v5, s[24:27], s52 offen")
    if diag:
        A("s_waitcnt vmcnt(0)")
        stamp()
        A("s_getreg_b32 s41, hwreg(HW_REG_XCC_ID)")
        A(f"s_lshl_b32 s43, s2, 2\ns_add_u32 s43, s43, s36\ns_lshl_b32 s43, s43, 6\ns_add_u32 s43, s43, {DIAG_OFF}")
        A("s_waitcnt lgkmcnt(0)\nv_mov_b32 v1, 0")
        for k in range(nst[0]):
            A(f"v_mov_b32 v2, s{64+2*k}\nbuffer_store_dword v2, v1, s[28:31], s43 offen offset:{4*k}")
        A(f"v_mov_b32 v2, s41\nbuffer_store_dword v2, v1, s[28:31], s43 offen offset:60")
    A("L_end:\ns_endpgm")
    return "\n".join([HEADER + f"; @launch grid=(256,1,1) block=(320,1,1) lds={lds}",
           '.amdgcn_target "amdgcn-amd-amdhsa--gfx950"', ".text",
           ".globl standalone__gqa_softmax__sampling_kernel", ".p2align 8",
           ".type standalone__gqa_softmax__sampling_kernel,@function",
           "standalone__gqa_softmax__sampling_kernel:"] + L + [f""".section .rodata,"a"
.p2align 6
.amdhsa_kernel standalone__gqa_softmax__sampling_kernel
  .amdhsa_next_free_vgpr 256
  .amdhsa_next_free_sgpr {96 if diag else 64}
  .amdhsa_accum_offset 256
  .amdhsa_group_segment_fixed_size 0
  .amdhsa_kernarg_size 48
  .amdhsa_user_sgpr_count 2
  .amdhsa_user_sgpr_kernarg_segment_ptr 1
  .amdhsa_system_sgpr_workgroup_id_x 1
  .amdhsa_float_denorm_mode_32 3
.end_amdhsa_kernel
"""])

if __name__ == "__main__":
    cfg = json.loads(sys.argv[1]) if len(sys.argv) > 1 else {}
    print(gen(**cfg))
```

```python
import sys, json, struct, math

HEADER = """; GQA decode attention, B=8 Hq=32 Hkv=4 Sq=4 Sk=8192 D=128, bf16 in / bf16 out.
;
"""

def f2u(x): return struct.unpack("<I", struct.pack("<f", x))[0]

def gen(spin=1 << 21, W=11, bq=10, t1=4, t2=6, pgap=5, psched=(1, 1, 2, 2, 2), ml_step=5,
        perm=(4, 5, 7, 0, 1, 2, 3, 6), diag=False, near=None, mimic=True, npoll=2, fflip=0, kf='nt', vf='nt'):
    L = []
    def A(s):
        for ln in s.split("\n"):
            ln = ln.strip()
            if ln: L.append(("" if ln.endswith(":") else "    ") + ln)
    R = 4
    PBUF, MLBUF, RING0 = 0, 16384, 20480
    lds = RING0 + 4 * R * 8192
    C = math.log2(math.e) / math.sqrt(128.0)
    if mimic: C = math.log2(math.e)
    SC = 128.0 ** -0.5
    ML_OFF, DATA_OFF, DIAG_OFF = 0x10000, 0x80000, 0x800000
    WS_BYTES = 0x900000 if diag else DATA_OFF + 0x200000
    if near is not None:
        ML_OFF, DATA_OFF = 0x10000, 0x400000
        WS_BYTES = 0x900000 if diag else 0x800000
    vKsrc = [1, 2, 3, 4]; vVsrc = 5; vKrd = list(range(6, 14)); vVrd = [14, 15, 16, 17]
    vM, vL = 18, 19
    Q0, KF0, S0, VF0, T0 = 20, 52, 84, 212, 244
    O0 = 20; PB = [36, 60]
    vPw, vPr, vMLw, vMLr = 6, [7, 8, 9], 10, [11, 12, 13]
    vZero, vPA, vPB = T0 + 8, T0 + 9, T0 + 10
    PRS = [vPA, vPB, T0 + 11, T0 + 7][:npoll]
    nst = [0]
    def stamp():
        if diag and nst[0] < 15:
            A(f"s_memrealtime s[{64+2*nst[0]}:{65+2*nst[0]}]"); nst[0] += 1
    dec = []; k = 0; first = True
    while k < 8:
        n = 1
        while k + n < 8 and perm[k + n] == perm[k] + n: n += 1
        dst = "s40" if first else "s41"
        dec.append(f"s_bfe_u32 {dst}, s2, {hex((n << 16) | k)}")
        if perm[k]: dec.append(f"s_lshl_b32 {dst}, {dst}, {perm[k]}")
        if not first: dec.append("s_or_b32 s40, s40, s41")
        first = False; k += n
    stamp()
    A(f"""
    s_load_dwordx8 s[4:11], s[0:1], 0
    s_load_dwordx2 s[28:29], s[0:1], 40
    s_cmp_ge_u32 s2, 0x100
    s_cbranch_scc1 L_end
    v_lshrrev_b32 v1, 6, v0
    v_and_b32 v0, 63, v0
    v_readfirstlane_b32 s36, v1
    {chr(10).join(dec)}
    s_lshr_b32 s38, s40, 3
    s_and_b32 s39, s40, 7
    s_lshl_b32 s40, s40, 18
    v_lshrrev_b32 v6, 4, v0
    v_and_b32 v7, 15, v0
    v_xor_b32 v8, v7, v6
    v_lshlrev_b32 v8, 4, v8
    v_lshl_add_u32 v1, v6, 8, v8
    v_xor_b32 v2, 64, v1
    v_xor_b32 v3, 0x80, v1
    v_xor_b32 v4, 0xc0, v1
    s_mov_b32 s18, 0x40000
    s_mov_b32 s19, 0x20000
    s_lshl_b32 s37, s36, 15
    s_add_u32 s37, s37, {RING0}
    s_lshl_b32 s44, s36, 13
    s_mov_b32 m0, s37
    s_add_u32 s43, s44, 0x1000
    s_cmp_eq_u32 s36, 4
    s_waitcnt lgkmcnt(0)
    s_cbranch_scc1 L_loader
    s_add_u32 s16, s6, s40
    s_addc_u32 s17, s7, 0
    """)
    for i in range(4): A(f"buffer_load_dwordx4 v{vKsrc[i]}, s[16:19], s44 offen offset:{i*1024} {kf} lds")
    A("s_add_u32 m0, s37, 4096\ns_lshl_b32 s41, s38, 13")
    for i in range(4): A(f"buffer_load_dwordx4 v{vKsrc[i]}, s[16:19], s43 offen offset:{i*1024} {kf} lds")
    A(f"""
    s_add_u32 s24, s4, s41
    s_addc_u32 s25, s5, 0
    s_mov_b32 s26, 0x2000
    s_mov_b32 s27, 0x20000
    s_and_b32 s41, s36, 1
    s_lshl_b32 s41, s41, 7
    v_xor_b32 v9, s41, v1
    v_xor_b32 v10, s41, v2
    s_lshl_b32 s41, s36, 11
    s_mov_b32 m0, s41
    s_mov_b32 s30, {hex(WS_BYTES)}
    s_mov_b32 s31, 0x20000
    buffer_load_dwordx4 v9, s[24:27], s41 offen lds
    buffer_load_dwordx4 v10, s[24:27], s41 offen offset:1024 lds
    s_branch L_compute
    L_loader:
    s_setprio 3
    s_add_u32 s16, s6, s40
    s_addc_u32 s17, s7, 0
    s_add_u32 s20, s8, s40
    s_addc_u32 s21, s9, 0
    s_mov_b32 s22, 0x40000
    s_mov_b32 s23, 0x20000
    v_lshlrev_b32 v8, 2, v6
    v_xor_b32 v8, v7, v8
    v_lshlrev_b32 v8, 4, v8
    v_lshl_add_u32 v{vVsrc}, v6, 8, v8
    """)
    groups = []
    for n in range(1, 16):
        if n == 15: groups += [(n, w, h) for h in range(2) for w in range(4)]
        else: groups += [(n, w, h) for w in range(4) for h in range(2)]
    NG = len(groups)
    rowname = lambda n: f"K row {n}" if n < 8 else f"V row {n-8}"
    ev = [(8 * n, n, rowname(n) + " landed") for n in range(1, 15)] + [(8 * 14 + 4, 15, "first half of V row 7 landed"), (8 * 15, 15, "V row 7 landed")]
    extra = {}
    extra.setdefault(bq, []).append("Q and K row 0 landed")
    k7 = 8 * 7 + W - 1
    extra.setdefault(k7 + t1, []).append("row max exchange"); extra.setdefault(k7 + t2, []).append("first P tile")
    assert t1 <= t2 < 8 and bq < 8 + W - 1
    freed = R; nbar = 0
    for gi in range(NG):
        if gi >= W - 1:
            landed = gi - (W - 1)
            A(f"s_waitcnt vmcnt({4*(W-1)})")
            while ev and ev[0][0] <= landed:
                A(f"s_barrier ; {ev[0][2]}"); nbar += 1
                freed = ev[0][1] + R
                ev.pop(0)
        for nm in extra.pop(gi, []):
            A(f"s_barrier ; {nm}"); nbar += 1
        n, w, h = groups[gi]
        assert n < freed, (gi, n, freed)
        kind, t = ("k", n) if n < 8 else ("v", n - 8)
        srd = "s[16:19]" if kind == "k" else "s[20:23]"
        A(f"s_mov_b32 m0, {RING0 + w*R*8192 + (n % R)*8192 + h*4096}")
        A(f"s_mov_b32 s44, {t*32768 + w*8192 + h*4096}")
        for i in range(4):
            va = vKsrc[i] if kind == "k" else vVsrc
            A(f"buffer_load_dwordx4 v{va}, {srd}, s44 offen offset:{i*1024} {kf if kind == 'k' else vf} lds")
    assert not extra
    for need, n, nm in ev:
        A(f"s_waitcnt vmcnt({4*(NG - need)})\ns_barrier ; {nm}"); nbar += 1
    assert nbar == 19, nbar
    A(f"""
    s_endpgm
    L_compute:
    v_lshrrev_b32 v{T0}, 5, v0
    v_and_b32 v{T0+1}, 31, v0
    v_xor_b32 v{T0+2}, v{T0}, v7
    v_lshlrev_b32 v{T0+2}, 4, v{T0+2}
    v_bfe_u32 v{T0+3}, v0, 2, 2
    v_lshl_add_u32 v{T0+4}, v{T0}, 2, v{T0+3}
    v_xor_b32 v{T0+5}, s36, v{T0+3}
    v_lshlrev_b32 v{T0+5}, 6, v{T0+5}
    v_lshl_add_u32 v{T0+5}, v{T0+4}, 8, v{T0+5}
    v_and_b32 v{T0+6}, 1, v6
    v_lshl_add_u32 v{T0+5}, v{T0+6}, 5, v{T0+5}
    v_and_b32 v{T0+6}, 3, v0
    v_lshl_add_u32 v{T0+5}, v{T0+6}, 3, v{T0+5}
    v_add_u32 v{vVrd[0]}, s37, v{T0+5}
    """)
    for j in range(1, 4):
        A(f"""
        s_xor_b32 s41, s36, {j}
        s_lshl_b32 s41, s41, 15
        s_add_u32 s41, s41, {RING0}
        v_add_u32 v{vVrd[j]}, s41, v{T0+5}
        """)
    A(f"v_lshl_add_u32 v{vKrd[0]}, v{T0+1}, 8, v{T0+2}")
    for j in range(1, 8): A(f"v_xor_b32 v{vKrd[j]}, {j*32}, v{vKrd[0]}")
    A(f"""
    {"; s45 = log2(e), s[58:59] = 1/sqrt(D)" if mimic else "; s45 = log2(e)/sqrt(D)"}
    s_mov_b32 s45, {hex(f2u(C))}
    {f"s_mov_b32 s58, {hex(f2u(SC))}; s_mov_b32 s59, s58".replace("; ", chr(10)) if mimic else ""}
    v_mov_b32 v{vM}, 0xff800000
    v_mov_b32 v{vZero}, 0
    s_lshl_b32 s42, s38, 2
    s_add_u32 s42, s42, s36
    """)
    if near is None: A(f"""
    s_lshl_b32 s50, s42, 7
    {f's_xor_b32 s50, s50, 0x2000' if fflip else ''}
    s_lshl_b32 s48, s38, 11
    s_lshl_b32 s41, s39, 8
    s_add_u32 s49, s48, s41
    s_add_u32 s49, s49, {hex(ML_OFF)}
    s_lshl_b32 s41, s39, 5
    s_add_u32 s48, s48, s41
    s_add_u32 s48, s48, {hex(ML_OFF)}
    s_lshl_b32 s46, s42, 14
    s_lshl_b32 s41, s39, 8
    s_add_u32 s47, s46, s41
    s_add_u32 s47, s47, {hex(DATA_OFF)}
    s_lshl_b32 s41, s39, 11
    s_add_u32 s46, s46, s41
    s_add_u32 s46, s46, {hex(DATA_OFF)}
    """)
    else: A(f"""
    s_bfe_u32 s56, s2, 0x10002
    s_xor_b32 s56, s56, {near}
    s_lshl_b32 s56, s56, 13
    s_lshr_b32 s41, s42, 6
    s_lshl_b32 s41, s41, 14
    s_and_b32 s50, s42, 63
    s_lshl_b32 s50, s50, 7
    s_add_u32 s50, s50, s41
    s_add_u32 s50, s50, s56
    s_lshr_b32 s41, s38, 2
    s_lshl_b32 s41, s41, 14
    s_and_b32 s48, s38, 3
    s_lshl_b32 s48, s48, 11
    s_add_u32 s48, s48, s41
    s_add_u32 s48, s48, s56
    s_add_u32 s48, s48, {hex(ML_OFF)}
    s_lshl_b32 s41, s39, 8
    s_add_u32 s49, s48, s41
    s_lshl_b32 s41, s39, 5
    s_add_u32 s48, s48, s41
    s_lshl_b32 s46, s42, 15
    s_bfe_u32 s41, s42, 0x10006
    s_lshl_b32 s41, s41, 13
    s_xor_b32 s41, s41, s56
    s_add_u32 s46, s46, s41
    s_add_u32 s46, s46, {hex(DATA_OFF)}
    s_lshl_b32 s41, s39, 8
    s_add_u32 s47, s46, s41
    s_and_b32 s41, s39, 3
    s_lshl_b32 s41, s41, 11
    s_add_u32 s46, s46, s41
    s_lshr_b32 s41, s39, 2
    s_lshl_b32 s41, s41, 14
    s_add_u32 s46, s46, s41
    """)
    A(f"""
    s_lshl_b32 s52, s36, 6
    s_lshl_b32 s55, 1, s39
    s_movk_i32 s54, 0xff
    s_mov_b32 s43, {hex(spin)}
    v_lshlrev_b32 v2, 3, v0
    v_bfe_u32 v{T0+4}, v0, 2, {3 if near is None else 2}
    v_lshlrev_b32 v1, 11, v{T0+4}
    {"" if near is None else f"v_bfe_u32 v{T0+4}, v0, 4, 1; v_lshl_add_u32 v1, v{T0+4}, 14, v1".replace("; ", chr(10))}
    v_lshl_add_u32 v1, v{T0}, 6, v1
    v_lshl_add_u32 v1, v{T0+6}, 4, v1
    v_lshlrev_b32 v3, 4, v0
    v_lshrrev_b32 v4, 4, v0
    v_lshlrev_b32 v4, 8, v4
    v_lshl_add_u32 v4, v{T0+6}, 3, v4
    v_lshlrev_b32 v5, 8, v{T0+6}
    v_bfe_u32 v{T0+4}, v0, 3, 1
    v_lshl_add_u32 v5, v{T0+4}, 5, v5
    v_lshl_add_u32 v5, v{T0}, 4, v5
    v_bfe_u32 v{T0+4}, v0, 2, 1
    v_lshl_add_u32 v5, v{T0+4}, 3, v5
    v_bfe_u32 v{T0+4}, v0, 4, 1
    v_lshl_add_u32 v5, v{T0+4}, 2, v5
    {chr(10).join(f'v_mov_b32 v{r}, s55' for r in PRS)}
    s_lshl_b32 s41, s38, 13
    s_lshl_b32 s44, s39, 10
    s_add_u32 s41, s41, s44
    s_add_u32 s24, s10, s41
    s_addc_u32 s25, s11, 0
    s_mov_b32 s26, 0x400
    s_waitcnt vmcnt(0)
    """)
    stamp()
    A("s_barrier")
    for j in range(8): A(f"ds_read_b128 v[{Q0+4*j}:{Q0+4*j+3}], v{vKrd[j]}")
    for j in range(8): A(f"v_add_u32 v{vKrd[j]}, s37, v{vKrd[j]}")
    def maxtile(t):
        b = S0 + 16 * t
        for r in range(0, 16, 2): A(f"v_max3_f32 v{vM}, v{b+r}, v{b+r+1}, v{vM}")
    def rndtile(t):
        if not mimic: return
        b = S0 + 16 * t
        for k in range(8): A(f"v_cvt_pk_bf16_f32 v{b+2*k}, v{b+2*k}, v{b+2*k+1}")
        for k in range(8): A(f"v_and_b32 v{b+2*k+1}, 0xffff0000, v{b+2*k}\nv_lshlrev_b32 v{b+2*k}, 16, v{b+2*k}")
        for k in range(8): A(f"v_pk_mul_f32 v[{b+2*k}:{b+2*k+1}], v[{b+2*k}:{b+2*k+1}], s[58:59]")
        for k in range(8): A(f"v_cvt_pk_bf16_f32 v{b+2*k}, v{b+2*k}, v{b+2*k+1}")
        for k in range(8): A(f"v_and_b32 v{b+2*k+1}, 0xffff0000, v{b+2*k}\nv_lshlrev_b32 v{b+2*k}, 16, v{b+2*k}")
    def ptile(t):
        b = S0 + 16 * t
        for r in range(16): A(f"v_fma_f32 v{b+r}, v{b+r}, s45, -v{vM}")
        for r in range(16): A(f"v_exp_f32 v{b+r}, v{b+r}")
        for r in range(16):
            if t == 0 and r == 0: continue
            if t == 0 and r == 1: A(f"v_add_f32 v{vL}, v{b}, v{b+1}")
            else: A(f"v_add_f32 v{vL}, v{vL}, v{b+r}")
        for k in range(8): A(f"v_cvt_pk_bf16_f32 v{b+k}, v{b+2*k}, v{b+2*k+1}")
    for t in range(8):
        A(f"; ---- K row {t}: S^T tile in v[{S0+16*t}:{S0+16*t+15}]")
        if t > 0: A("s_barrier")
        for j in range(8): A(f"ds_read_b128 v[{KF0+4*j}:{KF0+4*j+3}], v{vKrd[j]} offset:{(t % R)*8192}")
        if t > 0:
            A("s_nop 3")
            maxtile(t - 1)
        b = S0 + 16 * t
        for j in range(8):
            c = "0" if j == 0 else f"v[{b}:{b+15}]"
            A(f"s_waitcnt lgkmcnt({7-j})")
            A(f"v_mfma_f32_32x32x16_bf16 v[{b}:{b+15}], v[{KF0+4*j}:{KF0+4*j+3}], v[{Q0+4*j}:{Q0+4*j+3}], {c}")
        if 0 < t < 7: rndtile(t - 1)
    stamp()
    A(f"""
    v_lshlrev_b32 v{T0+1}, 4, v0
    v_lshlrev_b32 v{T0+2}, 2, v0
    s_lshl_b32 s41, s36, 11
    v_add_u32 v{vPw}, s41, v{T0+1}
    s_lshl_b32 s41, s36, 8
    v_add_u32 v{vMLw}, s41, v{T0+2}
    """)
    for j in range(1, 4):
        A(f"v_xor_b32 v{vPr[j-1]}, {j << 11}, v{vPw}\nv_xor_b32 v{vMLr[j-1]}, {j << 8}, v{vMLw}")
    A("s_nop 1")
    maxtile(7)
    A(f"""
    v_mov_b32 v{T0}, v{vM}
    s_nop 1
    v_permlane32_swap_b32 v{T0}, v{vM}
    v_max_f32 v{vM}, v{T0}, v{vM}
    ds_write_b32 v{vMLw}, v{vM} offset:{MLBUF}
    s_waitcnt lgkmcnt(0)
    s_barrier
    ds_read_b32 v{T0}, v{vMLr[0]} offset:{MLBUF}
    ds_read_b32 v{T0+1}, v{vMLr[1]} offset:{MLBUF}
    ds_read_b32 v{T0+2}, v{vMLr[2]} offset:{MLBUF}
    s_waitcnt lgkmcnt(0)
    v_max3_f32 v{T0}, v{T0}, v{T0+1}, v{T0+2}
    v_max_f32 v{vM}, v{T0}, v{vM}
    """)
    if mimic:
        A(f"""
        v_cvt_pk_bf16_f32 v{vM}, v{vM}, v{vM}
        v_lshlrev_b32 v{vM}, 16, v{vM}
        v_mul_f32 v{vM}, s58, v{vM}
        v_cvt_pk_bf16_f32 v{vM}, v{vM}, v{vM}
        v_lshlrev_b32 v{vM}, 16, v{vM}
        """)
    A(f"v_mul_f32 v{vM}, s45, v{vM}")
    pdone = [0]
    def pwrite(t):
        b = S0 + 16 * t
        for k2 in range(2):
            A(f"ds_write_b128 v{vPw}, v[{b+4*k2}:{b+4*k2+3}] offset:{PBUF + (t & 1)*8192 + k2*1024}")
    def pread(t):
        for j in range(1, 4):
            for k2 in range(2):
                r = PB[t & 1] + (j - 1) * 8 + k2 * 4
                A(f"ds_read_b128 v[{r}:{r+3}], v{vPr[j-1]} offset:{PBUF + (t & 1)*8192 + k2*1024}")
    def pcompute(k):
        for _ in range(k):
            if pdone[0] < 8:
                if pdone[0] >= 6: rndtile(pdone[0])
                ptile(pdone[0]); pdone[0] += 1
    psched = list(psched) + [8] * 10
    pcompute(psched[0]); pwrite(0)
    A("s_waitcnt lgkmcnt(0)\ns_barrier")
    pread(0)
    pcompute(psched[1]); assert pdone[0] >= 2
    pwrite(1)
    lstate = 0
    for t in range(8):
        slot = (8 + t) % R
        order = [(j, k2) for k2 in range(2) for j in range(4)] if t == 7 else [(j, k2) for j in range(4) for k2 in range(2)]
        def vreads(lst, base):
            for idx, (j, k2) in enumerate(lst):
                r = VF0 + (base + idx) * 4
                for s in range(2):
                    A(f"ds_read_b64_tr_b16 v[{r+2*s}:{r+2*s+1}], v{vVrd[j]} offset:{slot*8192 + k2*4096 + s*2048}")
        def mfma(idx, j, k2):
            r = VF0 + idx * 4
            p = S0 + 16 * t + 4 * k2 if j == 0 else PB[t & 1] + (j - 1) * 8 + k2 * 4
            c = "0" if (t == 0 and idx == 0) else f"v[{O0}:{O0+15}]"
            A(f"v_mfma_f32_32x32x16_bf16 v[{O0}:{O0+15}], v[{r}:{r+3}], v[{p}:{p+3}], {c}")
        if t == 7:
            assert lstate == 2
            A("s_waitcnt vmcnt(0) lgkmcnt(0)\ns_barrier")
            vreads(order[:4], 0)
            A(f"""
            s_mov_b64 exec, 1
            buffer_atomic_and v{vZero}, v{vZero}, s[28:31], s50 offen
            s_mov_b64 exec, -1
            """)
            for idx in range(4):
                A(f"s_waitcnt lgkmcnt({6 - 2*idx})"); mfma(idx, *order[idx])
            A("s_barrier")
            stamp()
            vreads(order[4:], 4)
            for idx in range(4, 8):
                A(f"s_waitcnt lgkmcnt({14 - 2*idx})"); mfma(idx, *order[idx])
            break
        A("s_waitcnt lgkmcnt(0)\ns_barrier")
        vreads(order, 0)
        for idx, (j, k2) in enumerate(order):
            A(f"s_waitcnt lgkmcnt({14 - 2*idx})"); mfma(idx, j, k2)
        pread(t + 1)
        if lstate == 1 and t >= ml_step:
            A(f"""
            s_cmp_lg_u32 s36, 0
            s_cbranch_scc1 L_noml
            ds_read_b32 v{T0}, v{vMLr[0]} offset:{MLBUF + 1024}
            ds_read_b32 v{T0+1}, v{vMLr[1]} offset:{MLBUF + 1024}
            ds_read_b32 v{T0+2}, v{vMLr[2]} offset:{MLBUF + 1024}
            s_waitcnt lgkmcnt(0)
            v_add_f32 v{T0}, v{T0}, v{T0+1}
            v_add_f32 v{vL}, v{vL}, v{T0+2}
            v_add_f32 v{vL}, v{vL}, v{T0}
            s_mov_b32 exec_hi, 0
            buffer_store_dwordx2 v[{vM}:{vL}], v2, s[28:31], s49 offen sc1
            s_mov_b32 exec_hi, -1
            L_noml:
            """)
            lstate = 2
        pcompute(psched[t + 2])
        if t + 2 < 8:
            assert pdone[0] >= t + 3
            pwrite(t + 2)
        if pdone[0] == 8 and lstate == 0:
            A(f"""
            v_mov_b32 v{T0}, v{vL}
            s_nop 1
            v_permlane32_swap_b32 v{T0}, v{vL}
            v_add_f32 v{vL}, v{T0}, v{vL}
            ds_write_b32 v{vMLw}, v{vL} offset:{MLBUF + 1024}
            """)
            lstate = 1
    A("; ---- publish the partial O (one 256-B block per consuming workgroup)\ns_nop 11")
    for s in range(2):
        for k in range(4*s, 4*s + 4): A(f"v_cvt_pk_bf16_f32 v{VF0+k}, v{O0+2*k}, v{O0+2*k+1}")
        A(f"buffer_store_dwordx4 v[{VF0+4*s}:{VF0+4*s+3}], v1, s[28:31], s47 offen offset:{s*128} sc1")
    stamp()
    atom = lambda r: A(f"buffer_atomic_or v{r}, v{vZero}, s[28:31], s50 offen sc0")
    A("s_mov_b64 exec, 1\ns_waitcnt vmcnt(0)")
    stamp()
    A("; arrive, then poll with two atomics in flight; the short sleep sets them half a round trip apart, which halves\n; the time between the last arrival and the poll that sees it")
    for k, r in enumerate(PRS):
        if k: A(f"s_sleep {pgap}")
        atom(r)
    A("L_poll:")
    for r in PRS:
        A(f"""
        s_waitcnt vmcnt({npoll - 1})
        v_or_b32 v{r}, s55, v{r}
        v_cmp_eq_u32 vcc, s54, v{r}
        s_cbranch_vccnz L_poll_ok
        v_mov_b32 v{r}, s55
        """)
        atom(r)
    A(f"""
    s_sub_u32 s43, s43, 1
    s_cmp_gt_i32 s43, 0
    s_cbranch_scc1 L_poll
    L_poll_ok:
    s_mov_b64 exec, -1
    """)
    stamp()
    X, Y, U = S0, S0 + 8, S0 + 16
    e0, a, b, w0, w1, Ls = S0 + 32, S0 + 36, S0 + 37, S0 + 38, S0 + 40, S0 + 44
    A(f"""
    buffer_load_dwordx2 v[{e0}:{e0+1}], v4, s[28:31], s48 offen sc1
    buffer_load_dwordx2 v[{e0+2}:{e0+3}], v4, s[28:31], s48 offen offset:1024 sc1
    buffer_load_dwordx4 v[{X}:{X+3}], v3, s[28:31], s46 offen sc1
    buffer_load_dwordx4 v[{X+4}:{X+7}], v3, s[28:31], s46 offen offset:1024 sc1
    s_waitcnt vmcnt(2)
    v_max_f32 v{a}, v{e0}, v{e0+2}
    v_max_f32 v{b}, v{e0}, v{e0+2}
    s_waitcnt vmcnt(1)
    v_lshlrev_b32 v{Y}, 16, v{X}
    v_permlane16_swap_b32 v{a}, v{b}
    v_and_b32 v{Y+1}, 0xffff0000, v{X}
    v_max_f32 v{a}, v{a}, v{b}
    v_lshlrev_b32 v{Y+2}, 16, v{X+1}
    v_mov_b32 v{b}, v{a}
    v_and_b32 v{Y+3}, 0xffff0000, v{X+1}
    v_lshlrev_b32 v{Y+4}, 16, v{X+2}
    v_permlane32_swap_b32 v{a}, v{b}
    v_and_b32 v{Y+5}, 0xffff0000, v{X+2}
    v_max_f32 v{a}, v{a}, v{b}
    v_sub_f32 v{w0}, v{e0}, v{a}
    v_sub_f32 v{w1}, v{e0+2}, v{a}
    v_exp_f32 v{w0}, v{w0}
    v_exp_f32 v{w1}, v{w1}
    v_lshlrev_b32 v{Y+6}, 16, v{X+3}
    v_and_b32 v{Y+7}, 0xffff0000, v{X+3}
    v_mul_f32 v{Ls}, v{w0}, v{e0+1}
    v_fmac_f32 v{Ls}, v{w1}, v{e0+3}
    s_waitcnt vmcnt(0)
    v_mov_b32 v{b}, v{Ls}
    """)
    for k in range(4): A(f"v_lshlrev_b32 v{U+2*k}, 16, v{X+4+k}\nv_and_b32 v{U+2*k+1}, 0xffff0000, v{X+4+k}")
    A(f"v_permlane16_swap_b32 v{Ls}, v{b}")
    for k in range(4): A(f"v_pk_mul_f32 v[{Y+2*k}:{Y+2*k+1}], v[{Y+2*k}:{Y+2*k+1}], v[{w0}:{w0+1}] op_sel_hi:[1,0]")
    A(f"v_add_f32 v{Ls}, v{Ls}, v{b}")
    pk = lambda k: A(f"v_pk_fma_f32 v[{Y+2*k}:{Y+2*k+1}], v[{U+2*k}:{U+2*k+1}], v[{w1}:{w1+1}], v[{Y+2*k}:{Y+2*k+1}] op_sel_hi:[1,0,1]")
    pk(0); pk(1)
    A(f"v_mov_b32 v{b}, v{Ls}")
    pk(2); pk(3)
    A(f"""
    v_permlane32_swap_b32 v{Ls}, v{b}
    v_add_f32 v{Ls}, v{Ls}, v{b}
    v_permlane32_swap_b32 v{Y}, v{Y+4}
    v_permlane32_swap_b32 v{Y+1}, v{Y+5}
    v_permlane32_swap_b32 v{Y+2}, v{Y+6}
    v_permlane32_swap_b32 v{Y+3}, v{Y+7}
    v_rcp_f32 v{Ls}, v{Ls}
    v_add_f32 v{Y}, v{Y}, v{Y+4}
    v_add_f32 v{Y+2}, v{Y+2}, v{Y+6}
    v_add_f32 v{Y+1}, v{Y+1}, v{Y+5}
    v_add_f32 v{Y+3}, v{Y+3}, v{Y+7}
    v_permlane16_swap_b32 v{Y}, v{Y+2}
    s_nop 0
    v_permlane16_swap_b32 v{Y+1}, v{Y+3}
    v_add_f32 v{Y}, v{Y}, v{Y+2}
    v_add_f32 v{Y+1}, v{Y+1}, v{Y+3}
    v_mul_f32 v{Y}, v{Y}, v{Ls}
    v_mul_f32 v{Y+1}, v{Y+1}, v{Ls}
    """)
    stamp()
    A(f"v_cvt_pk_bf16_f32 v{Y}, v{Y}, v{Y+1}\nbuffer_store_dword v{Y}, v5, s[24:27], s52 offen")
    if diag:
        A("s_waitcnt vmcnt(0)")
        stamp()
        A("s_getreg_b32 s41, hwreg(HW_REG_XCC_ID)")
        A(f"s_lshl_b32 s43, s2, 2\ns_add_u32 s43, s43, s36\ns_lshl_b32 s43, s43, 6\ns_add_u32 s43, s43, {DIAG_OFF}")
        A("s_waitcnt lgkmcnt(0)\nv_mov_b32 v1, 0")
        for k in range(nst[0]):
            A(f"v_mov_b32 v2, s{64+2*k}\nbuffer_store_dword v2, v1, s[28:31], s43 offen offset:{4*k}")
        A(f"v_mov_b32 v2, s41\nbuffer_store_dword v2, v1, s[28:31], s43 offen offset:60")
    A("L_end:\ns_endpgm")
    return "\n".join([HEADER + f"; @launch grid=(256,1,1) block=(320,1,1) lds={lds}",
           '.amdgcn_target "amdgcn-amd-amdhsa--gfx950"', ".text",
           ".globl standalone__gqa_softmax__sampling_kernel", ".p2align 8",
           ".type standalone__gqa_softmax__sampling_kernel,@function",
           "standalone__gqa_softmax__sampling_kernel:"] + L + [f""".section .rodata,"a"
.p2align 6
.amdhsa_kernel standalone__gqa_softmax__sampling_kernel
  .amdhsa_next_free_vgpr 256
  .amdhsa_next_free_sgpr {96 if diag else 64}
  .amdhsa_accum_offset 256
  .amdhsa_group_segment_fixed_size 0
  .amdhsa_kernarg_size 48
  .amdhsa_user_sgpr_count 2
  .amdhsa_user_sgpr_kernarg_segment_ptr 1
  .amdhsa_system_sgpr_workgroup_id_x 1
  .amdhsa_float_denorm_mode_32 3
.end_amdhsa_kernel
"""])

if __name__ == "__main__":
    cfg = json.loads(sys.argv[1]) if len(sys.argv) > 1 else {}
    print(gen(**cfg))
```
